```python
import torch

def _softmax(x, axis=-1):
    return torch.softmax(x, dim=axis)
def _gelu(x):
    return torch.nn.functional.gelu(x, approximate="tanh")
def _silu(x):
    return torch.nn.functional.silu(x)
def _sigmoid(x):
    return torch.sigmoid(x)
def _layernorm(x, axis=-1, eps=1e-5):
    m = x.mean(dim=axis, keepdim=True)
    v = x.var(dim=axis, keepdim=True, unbiased=False)
    return (x - m) / torch.sqrt(v + eps)
def _scatter_add(tgt, idx, src, axis=0):
    return tgt.clone().index_add_(axis, idx, src)
def _segment_sum(src, seg, n):
    out = torch.zeros((n,) + src.shape[1:], dtype=src.dtype)
    return out.index_add_(0, seg, src)
def _pad(x, pw):
    flat = tuple(v for pair in reversed(pw) for v in pair)
    return torch.nn.functional.pad(x, flat)

kernel_name = 'sequential_preLN__compressed_kv_cla__dense_activation_gelu__prompt'

def setup_inputs():

    _w = (lambda a: (lambda t: t.to(torch.bfloat16) if t.is_floating_point() else t)(torch.as_tensor(a)))
    def _A_setup():
        B, H, Sq, Sk, D, M = 1, 32, 2048, 2048, 128, 640
        Dc = 4 * D
        return {
            "x": _w((lambda *s: torch.randn(*s, dtype=torch.bfloat16) * 0.05)(B, Sq, M)),
            "c_kv": _w((lambda *s: torch.randn(*s, dtype=torch.bfloat16) * 0.4)(B, Sk, Dc)),
            "w_q": _w((lambda *s: torch.randn(*s, dtype=torch.bfloat16) * 1.6)(M, H, D) * (M ** -0.5)),
            "w_uk": _w((lambda *s: torch.randn(*s, dtype=torch.bfloat16) * 1.6)(Dc, H, D) * (Dc ** -0.5)),
            "w_uv": _w((lambda *s: torch.randn(*s, dtype=torch.bfloat16) * 0.4)(Dc, H, D) * (Dc ** -0.5)),
            "w_o": _w((lambda *s: torch.randn(*s, dtype=torch.bfloat16) * 0.4)(H, D, M) * ((H * D) ** -0.5)),
        }
    _A_in = _A_setup()

    def _B_setup():
        B, S, D, F = 1, 2048, 640, 1728
        return {
            "x": _w((lambda *s: torch.randn(*s, dtype=torch.bfloat16) * 0.05)(B, S, D)),
            "w1": _w((lambda *s: torch.randn(*s, dtype=torch.bfloat16) * 0.8)(D, F) * (D ** -0.5)),
            "b1": _w((lambda *s: torch.randn(*s, dtype=torch.bfloat16) * 12.8)(F) * 0.01),
            "w2": _w((lambda *s: torch.randn(*s, dtype=torch.bfloat16) * 0.2)(F, D) * (F ** -0.5)),
            "b2": _w((lambda *s: torch.randn(*s, dtype=torch.bfloat16) * 3.2)(D) * 0.01),
        }
    _B_in = _B_setup()

    return {
        "A_x": _A_in["x"],
        "A_c_kv": _A_in["c_kv"],
        "A_w_q": _A_in["w_q"],
        "A_w_uk": _A_in["w_uk"],
        "A_w_uv": _A_in["w_uv"],
        "A_w_o": _A_in["w_o"],
        "B_x": _B_in["x"],
        "B_w1": _B_in["w1"],
        "B_b1": _B_in["b1"],
        "B_w2": _B_in["w2"],
        "B_b2": _B_in["b2"],
    }

def reference(A_x, A_c_kv, A_w_q, A_w_uk, A_w_uv, A_w_o, B_x, B_w1, B_b1, B_w2, B_b2):
    def _A_ref(x, c_kv, w_q, w_uk, w_uv, w_o):
        B, Sq, M = x.shape[0], x.shape[1], x.shape[2]
        Sk = c_kv.shape[1]
        H, D = w_q.shape[1], w_q.shape[2]
        q = torch.einsum("bqm,mhd->bhqd", x, w_q)
        k = torch.einsum("bkc,chd->bhkd", c_kv, w_uk)
        v = torch.einsum("bkc,chd->bhkd", c_kv, w_uv)
        scores = torch.einsum("bhqd,bhkd->bhqk", q, k) * (D ** -0.5)
        off = Sk - Sq
        qi = torch.arange(Sq)[:, None]
        kj = torch.arange(Sk)[None, :]
        cmask = kj <= (qi + off)
        scores = torch.where(cmask[None, None], scores, -1e9)
        p = _softmax(scores, axis=-1)
        ctx = torch.einsum("bhqk,bhkd->bhqd", p, v)
        return torch.einsum("bhqd,hdm->bqm", ctx, w_o)

    def _B_ref(x, w1, b1, w2, b2):
        h = torch.einsum("bsd,df->bsf", x, w1) + b1
        h = _gelu(h)
        return torch.einsum("bsf,fd->bsd", h, w2) + b2

    x = A_x
    h = x + _A_ref(_layernorm(x, axis=-1), A_c_kv, A_w_q, A_w_uk, A_w_uv, A_w_o)
    h2 = h + _B_ref(_layernorm(h, axis=-1), B_w1, B_b1, B_w2, B_b2)
    return h2
```

```python
import re

def v(i, n=1):
    return f"v{i}" if n == 1 else f"v[{i}:{i+n-1}]"
def s(i, n=1):
    return f"s{i}" if n == 1 else f"s[{i}:{i+n-1}]"

_REG_RE = re.compile(r"^(v|s|a)(?:(\d+)|\[(\d+):(\d+)\])$")

def parse_reg(tok):
    tok = tok.strip()
    neg = tok.startswith('-')
    if neg: tok = tok[1:]
    if tok.startswith('abs(') and tok.endswith(')'): tok = tok[4:-1]
    if tok.startswith('|') and tok.endswith('|'): tok = tok[1:-1]
    m = _REG_RE.match(tok)
    if m:
        k = m.group(1)
        if m.group(2) is not None:
            lo = hi = int(m.group(2))
        else:
            lo, hi = int(m.group(3)), int(m.group(4))
        return [(k, i) for i in range(lo, hi + 1)]
    if tok == 'vcc': return [('s', 106), ('s', 107)]
    if tok == 'exec': return [('s', 126), ('s', 127)]
    if tok == 'm0': return [('s', 124)]
    if tok == 'scc': return []
    return []

TRANS = ('v_exp_f32', 'v_log_f32', 'v_rcp_f32', 'v_rsq_f32', 'v_sqrt_f32', 'v_sin_f32', 'v_cos_f32')

class Ins:
    __slots__ = ('text', 'op', 'kind', 'wr', 'rd', 'nop', 'passes', 'srcc', 'label', 'target', 'dpp', 'stdata', 'lanesel')
    def __init__(self, text):
        self.text = text
        self.label = None; self.target = None
        self.wr = set(); self.rd = set(); self.nop = 0; self.passes = 0; self.srcc = set(); self.dpp = False
        self.stdata = set()
        t = text.split(';')[0].strip()
        if t.endswith(':'):
            self.kind = 'label'; self.label = t[:-1]; self.op = ''; return
        parts = t.split(None, 1)
        op = parts[0]; self.op = op
        rest = parts[1] if len(parts) > 1 else ''
        ops = [o.strip() for o in rest.split(',')] if rest else []
        mods = []
        if ops:
            lp = ops[-1].split()
            ops[-1] = lp[0] if lp else ''
            mods = lp[1:]
        R = parse_reg
        def rd(o): self.rd.update(R(o))
        def wr(o): self.wr.update(R(o))
        if op.startswith('v_mfma'):
            self.kind = 'mfma'
            self.passes = 8 if '32x32' in op else 4
            wr(ops[0]); rd(ops[1]); rd(ops[2]); rd(ops[3]); self.srcc = set(R(ops[3]))
        elif op.startswith('v_cmp'):
            self.kind = 'valu'; wr(ops[0]); [rd(o) for o in ops[1:]]
        elif op in ('v_readfirstlane_b32', 'v_readlane_b32'):
            self.kind = 'valu'; wr(ops[0]); [rd(o) for o in ops[1:]]; self.lanesel = True
        elif op.startswith('v_permlane'):
            self.kind = 'valu'; wr(ops[0]); wr(ops[1]); rd(ops[0]); rd(ops[1])
        elif op.startswith('v_'):
            self.kind = 'trans' if op in TRANS else 'valu'
            wr(ops[0])
            k = 1
            if op.startswith(('v_add_co', 'v_addc_co', 'v_sub_co', 'v_subb_co')):
                wr(ops[1]); k = 2
            [rd(o) for o in ops[k:]]
            if op.startswith(('v_fmac', 'v_dot2c', 'v_mac')): rd(ops[0])
            if op.startswith('v_cndmask') and len(ops) == 3: rd('vcc')
            if any(m.startswith(('row_', 'quad_perm', 'wave_')) for m in mods): self.dpp = True
        elif op.startswith('ds_read') or op.startswith('ds_bpermute') or op.startswith('ds_swizzle'):
            self.kind = 'ds'; wr(ops[0]); [rd(o) for o in ops[1:]]
        elif op.startswith('ds_write'):
            self.kind = 'ds'; [rd(o) for o in ops]
        elif op.startswith('buffer_load') or op.startswith('global_load'):
            if 'lds' in mods:
                self.kind = 'dma'; [rd(o) for o in ops]; rd('m0')
            else:
                self.kind = 'vmem'; wr(ops[0]); [rd(o) for o in ops[1:]]
        elif op.startswith('buffer_store') or op.startswith('global_store') or op.startswith('buffer_atomic') or op.startswith('global_atomic'):
            self.kind = 'vmem'; [rd(o) for o in ops]
            if 'x4' in op or 'x3' in op:
                self.stdata = set(R(ops[0] if op.startswith('buffer') else ops[1]))
        elif op == 's_nop':
            self.kind = 'nop'; self.nop = int(ops[0], 0) + 1
        elif op.startswith('s_cbranch') or op == 's_branch':
            self.kind = 'branch'; self.target = ops[0]
        elif op.startswith('s_waitcnt') or op in ('s_barrier', 's_endpgm', 's_setprio', 's_sleep'):
            self.kind = 'sother'
        elif op.startswith('s_load') or op.startswith('s_buffer_load'):
            self.kind = 'smem'; wr(ops[0]); [rd(o) for o in ops[1:]]
        elif op.startswith('s_cmp'):
            self.kind = 'salu'; [rd(o) for o in ops]
        elif op.startswith('s_'):
            self.kind = 'salu'; wr(ops[0]); [rd(o) for o in ops[1:]]
            if 'saveexec' in op: wr('exec')
        else:
            raise ValueError("unknown instr " + text)

def required_gap(p, c):
    need = 0
    pv = p.kind in ('valu', 'trans')
    cv = c.kind in ('valu', 'trans')
    vw = {r for r in p.wr if r[0] in 'va'}
    sw = {r for r in p.wr if r[0] == 's'}
    if pv:
        if c.kind == 'mfma' and vw & c.rd: need = max(need, 2)
        if p.kind == 'trans' and cv and c.kind != 'trans' and (vw & (c.rd | c.wr)): need = max(need, 1)
        if p.kind == 'trans' and c.kind in ('mfma',) and vw & c.rd: need = max(need, 2)
        if sw:
            if cv and (sw & c.rd): need = max(need, 2)
            if c.op in ('v_readlane_b32', 'v_writelane_b32') and (sw & c.rd): need = max(need, 4)
            if c.kind in ('vmem', 'dma') and (sw & c.rd): need = max(need, 5)
        if c.op in ('v_readfirstlane_b32', 'v_readlane_b32') and vw & c.rd: need = max(need, 1)
        if c.op.startswith('v_permlane') and vw & (c.rd): need = max(need, 2)
        if c.dpp and vw & c.rd: need = max(need, 2)
    if p.kind == 'mfma':
        P = p.passes
        big = {4: 8, 8: 12}[P]
        if c.kind == 'mfma':
            ab = c.rd - c.srcc
            if vw & ab: need = max(need, big)
            if vw & c.srcc:
                if c.srcc == p.wr and c.passes == p.passes: pass
                else: need = max(need, {4: 6, 8: 10}[P] + 0)
        elif cv or c.kind in ('vmem', 'ds', 'dma'):
            if vw & (c.rd | c.wr): need = max(need, big)
        if cv and (p.srcc & c.wr): need = max(need, {4: 3, 8: 7}[P])
    if p.kind == 'salu' and ('s', 124) in p.wr and c.kind == 'dma': need = max(need, 1)
    if p.stdata:
        if cv and (p.stdata & c.wr): need = max(need, 2)
        elif (p.stdata & c.wr): need = max(need, 1)
    return need

class Asm:
    def __init__(self):
        self.ins = []
        self.lgkm = []
        self.vm = []
        self.auto_wait = True
        self.nlabel = 0
    def _slots_since(self, idx):
        pass
    def raw(self, text):
        self.ins.append(Ins(text) if True else text)
    def raw_text(self, t):
        i = Ins.__new__(Ins); i.text = t; i.kind = 'label'; i.op = ''; i.wr = set(); i.rd = set(); i.nop = 0
        i.label = '__raw%d' % len(self.ins); i.target = None; i.stdata = set(); i.dpp = False; i.srcc = set(); i.passes = 0
        self.ins.append(i)
    def comment(self, t):
        i = Ins.__new__(Ins); i.text = "; " + t; i.kind = 'comment'; i.op = ''; i.wr = set(); i.rd = set(); i.nop = 0
        i.label = None; i.target = None; i.stdata = set(); i.dpp = False; i.srcc = set(); i.passes = 0
        self.ins.append(i)
    def __call__(self, text):
        if isinstance(text, list):
            for x in text: self(x)
            return
        c = Ins(text)
        if c.kind == 'label':
            self.ins.append(c); return
        if self.auto_wait:
            touched = c.rd | c.wr
            n = None
            for i, d in enumerate(self.lgkm):
                if d & touched: n = len(self.lgkm) - 1 - i
            if n is not None: self.wait_lgkm(n)
            n = None
            for i, d in enumerate(self.vm):
                if d & touched: n = len(self.vm) - 1 - i
            if n is not None: self.wait_vm(n)
        pad = self._needed_pad(self.ins, c)
        while pad > 0:
            k = min(pad, 16)
            self.ins.append(Ins(f"s_nop {k-1}")); pad -= k
        self.ins.append(c)
        if c.kind == 'ds':
            self.lgkm.append({r for r in c.wr})
        elif c.kind == 'smem':
            self.lgkm.append({r for r in c.wr}); self.lgkm.append(set())
        elif c.kind in ('vmem', 'dma'):
            self.vm.append({r for r in c.wr})
        elif c.op == 's_waitcnt':
            m = re.search(r'lgkmcnt\((\d+)\)', text)
            if m:
                n = int(m.group(1)); self.lgkm = self.lgkm[len(self.lgkm) - n:] if n < len(self.lgkm) else self.lgkm
                if n == 0: self.lgkm = []
            m = re.search(r'vmcnt\((\d+)\)', text)
            if m:
                n = int(m.group(1))
                if n == 0: self.vm = []
                elif n < len(self.vm): self.vm = self.vm[len(self.vm) - n:]
    @staticmethod
    def _needed_pad(ins, c):
        dist = 0; pad = 0
        for p in reversed(ins):
            if p.kind in ('comment', 'label'): continue
            if dist >= 20: break
            need = required_gap(p, c)
            if need > dist: pad = max(pad, need - dist)
            dist += p.nop if p.kind == 'nop' else 1
        return pad
    def wait_lgkm(self, n):
        n = min(n, 15)
        if n < len(self.lgkm): self(f"s_waitcnt lgkmcnt({n})")
    def wait_vm(self, n):
        n = min(n, 63)
        if n < len(self.vm): self(f"s_waitcnt vmcnt({n})")
    def label(self, name):
        self(name + ":")
    def newlabel(self, base="L"):
        self.nlabel += 1
        return f"{base}_{self.nlabel}"
    def snapshot(self):
        return ([set(x) for x in self.lgkm], [set(x) for x in self.vm])
    def restore(self, snap):
        self.lgkm = [set(x) for x in snap[0]]; self.vm = [set(x) for x in snap[1]]
    def check_branches(self):
        labels = {i.label: k for k, i in enumerate(self.ins) if i.kind == 'label'}
        errs = 0
        for k, b in enumerate(self.ins):
            if b.kind != 'branch': continue
            if b.target not in labels: continue
            pre = [x for x in self.ins[max(0, k - 40):k + 1] if x.kind not in ('comment', 'label')]
            seq = list(pre)
            cnt = 0
            for c in self.ins[labels[b.target]:]:
                if c.kind in ('comment', 'label'): continue
                pad = Asm._needed_pad(seq, c)
                if pad > 0:
                    print(f"HAZARD across branch {b.text} -> {c.text} needs {pad}"); errs += 1
                seq.append(c); cnt += 1
                if cnt > 24 or c.kind == 'branch' and c.op == 's_branch': break
        return errs
    def text(self):
        out = []
        for i in self.ins:
            out.append(i.text if i.kind == 'label' else "    " + i.text)
        return "\n".join(out) + "\n"
```

```python
from asmlib import *
import struct
def f32hex(x):
    return '0x%08x' % struct.unpack('<I', struct.pack('<f', x))[0]

WS_XN   = 0x0000000
WS_KIMG = 0x0400000
WS_VIMG = 0x1400000
WS_CTX  = 0x2400000
WS_PART = 0x3400000
PART_SZ = 2048*640*4
WS_H    = 0x4800000
WS_HN   = 0x4E00000
WS_H1   = 0x5200000
WS_PART2 = 0x5A00000
WS_END  = 0x7000000

ARG = dict(x=0, ckv=8, wq=16, wuk=24, wuv=32, wo=40, bx=48, w1=56, b1=64, w2=72, b2=80, out=88, dbg=96, ws=104)

def srd(a, dst, base_s, size, add=0):
    if add:
        a(f"s_add_u32 {s(dst)}, {s(base_s)}, {add}")
        a(f"s_addc_u32 {s(dst+1)}, {s(base_s+1)}, 0")
    else:
        a(f"s_mov_b32 {s(dst)}, {s(base_s)}")
        a(f"s_mov_b32 {s(dst+1)}, {s(base_s+1)}")
    a(f"s_mov_b32 {s(dst+2)}, {size}")
    a(f"s_mov_b32 {s(dst+3)}, 0x00020000")

def kernel_header(a, name):
    a.raw_text(f".globl {name}\n.p2align 8\n.type {name},@function")
    a.label(name)

def kd(name, vgpr, sgpr=102, accum=None):
    accum = accum if accum is not None else (vgpr + 3) // 4 * 4
    return f""".p2align 6
.amdhsa_kernel {name}
  .amdhsa_next_free_vgpr {vgpr}
  .amdhsa_next_free_sgpr {sgpr}
  .amdhsa_accum_offset {accum}
  .amdhsa_group_segment_fixed_size 0
  .amdhsa_kernarg_size 112
  .amdhsa_user_sgpr_count 2
  .amdhsa_user_sgpr_kernarg_segment_ptr 1
  .amdhsa_system_sgpr_workgroup_id_x 1
.end_amdhsa_kernel
"""

def interleave(a, main, fill, lead=0):
    fill = list(fill)
    n = len(main)
    for _ in range(lead):
        if fill: a(fill.pop(0))
    total = len(fill)
    done = 0
    for i, m in enumerate(main):
        a(m)
        want = (total * (i + 1)) // n
        while done < want:
            a(fill[done]); done += 1
    while done < total:
        a(fill[done]); done += 1

def swap23_v(a, dst, src, tmp):
    a(f"v_and_b32 {v(tmp)}, 4, {v(src)}")
    a(f"v_lshlrev_b32 {v(tmp)}, 1, {v(tmp)}")
    a(f"v_and_b32 {v(dst)}, 0x13, {v(src)}")
    a(f"v_or_b32 {v(dst)}, {v(dst)}, {v(tmp)}")
    a(f"v_and_b32 {v(tmp)}, 8, {v(src)}")
    a(f"v_lshrrev_b32 {v(tmp)}, 1, {v(tmp)}")
    a(f"v_or_b32 {v(dst)}, {v(dst)}, {v(tmp)}")

def ln_rows(a, data, ntmp, out_regs, tmp):
    pass
```

```python
from gen_common import *

import os
FLAGS=os.environ.get('K1FLAGS','')
def gen_k1(a):
    name = "k1_kernel"
    kernel_header(a, name)
    a("s_cmp_ge_u32 s2, 256")
    a("s_cbranch_scc1 K1_END")
    a("s_load_dwordx2 s[4:5], s[0:1], 8")
    a("s_load_dwordx4 s[8:11], s[0:1], 24")
    a("s_load_dwordx2 s[6:7], s[0:1], 0")
    a("s_load_dwordx2 s[12:13], s[0:1], 104")
    a("v_lshrrev_b32 v1, 6, v0")
    a("v_and_b32 v0, 63, v0")
    a("v_readfirstlane_b32 s3, v1")
    a("s_and_b32 s36, s2, 7")
    a("s_lshr_b32 s37, s2, 3")
    a("s_and_b32 s37, s37, 3")
    a("s_lshl_b32 s37, s37, 3")
    a("s_add_u32 s36, s36, s37")
    a("s_lshr_b32 s37, s2, 5")
    a("s_lshr_b32 s38, s36, 4")
    a("s_and_b32 s43, s36, 15")
    a("s_lshr_b32 s39, s3, 2")
    a("s_and_b32 s40, s3, 3")
    a("s_lshl_b32 s41, s3, 11")
    a("s_waitcnt lgkmcnt(0)")
    srd(a, 16, 4, 2048*512*2)
    a("s_cmp_eq_u32 s38, 0")
    a("s_cselect_b32 s20, s8, s10")
    a("s_cselect_b32 s21, s9, s11")
    a("s_mov_b32 s22, %d" % (512*4096*2))
    a("s_mov_b32 s23, 0x00020000")
    a("s_mov_b32 s44, %d" % WS_KIMG)
    a("s_mov_b32 s45, %d" % WS_VIMG)
    a("s_cselect_b32 s44, s44, s45")
    a("s_add_u32 s24, s12, s44")
    a("s_addc_u32 s25, s13, 0")
    a("s_mov_b32 s26, 0x1000000")
    a("s_mov_b32 s27, 0x00020000")
    srd(a, 28, 6, 2048*640*2)
    srd(a, 32, 12, 64*40*1024, add=WS_XN)

    LN = 40
    vLNoff = 38
    a("v_lshrrev_b32 v2, 4, v0")
    a("v_and_b32 v3, 15, v0")
    a("s_lshl_b32 s45, s2, 3")
    a("s_lshl_b32 s46, s3, 2")
    a("s_add_u32 s45, s45, s46")
    a("v_add_u32 v37, s45, v2")
    a("s_movk_i32 s46, 1280")
    a("v_mul_lo_u32 v38, v37, s46")
    a("v_lshlrev_b32 v4, 4, v3")
    a("v_add_u32 v38, v38, v4")
    a("s_cmp_ge_u32 s3, 2")
    a("s_cbranch_scc1 K1_NOLN")
    for c in range(5):
        a(f"buffer_load_dwordx4 {v(LN+4*c,4)}, v38, s[28:31], 0 offen offset:{256*c}")
    a.label("K1_NOLN")
    a.vm = []

    vXd, vWd0, vWd1 = 5, 6, 7
    vXa0, vXa1, vWa0, vWa1 = 8, 9, 10, 11
    vSt = 12
    XBASE, WBASE = 0, 65536
    a("v_lshrrev_b32 v2, 2, v0")
    a("s_lshl_b32 s45, s37, 8")
    a("s_lshl_b32 s46, s3, 5")
    a("s_add_u32 s45, s45, s46")
    a("v_add_u32 v2, s45, v2")
    a("v_lshlrev_b32 v2, 10, v2")
    a("v_and_b32 v3, 3, v0")
    a("v_lshrrev_b32 v4, 4, v0")
    a("v_xor_b32 v3, v3, v4")
    a("v_lshlrev_b32 v3, 4, v3")
    a(f"v_add_u32 {v(vXd)}, v2, v3")
    a("v_lshrrev_b32 v2, 5, v0")
    a("v_and_b32 v3, 31, v0")
    a("s_lshl_b32 s45, s3, 2")
    a("s_lshl_b32 s46, s43, 9")
    for i, dst in ((0, vWd0), (1, vWd1)):
        a(f"v_add_u32 v4, {2*i}, v2")
        a("v_add_u32 v13, s45, v4")
        a("v_lshlrev_b32 v13, 13, v13")
        a("v_lshlrev_b32 v4, 2, v4")
        a("v_xor_b32 v4, v4, v3")
        a("v_lshlrev_b32 v4, 4, v4")
        a("v_add_u32 v13, v13, v4")
        a(f"v_add_u32 {v(dst)}, s46, v13")
    a("v_and_b32 v2, 31, v0")
    swap23_v(a, 3, 2, 4)
    a("v_lshrrev_b32 v4, 2, v3")
    a("v_and_b32 v4, 3, v4")
    a("v_lshrrev_b32 v13, 5, v0")
    a("v_xor_b32 v4, v4, v13")
    a("v_lshlrev_b32 v4, 4, v4")
    a("v_lshlrev_b32 v3, 6, v3")
    a("v_add_u32 v3, v3, v4")
    a("s_lshl_b32 s45, s39, 13")
    a(f"v_add_u32 {v(vXa0)}, s45, v3")
    a(f"v_xor_b32 {v(vXa1)}, 32, {v(vXa0)}")
    a("v_and_b32 v2, 15, v0")
    a("v_lshrrev_b32 v3, 2, v2")
    a("v_and_b32 v4, 3, v2")
    a("v_lshrrev_b32 v13, 5, v0")
    a("v_lshlrev_b32 v13, 3, v13")
    a("v_add_u32 v13, v13, v3")
    a("v_lshlrev_b32 v13, 9, v13")
    a("v_lshrrev_b32 v14, 4, v0")
    a("v_and_b32 v14, 1, v14")
    a("v_lshlrev_b32 v14, 1, v14")
    a("v_and_b32 v15, 1, v4")
    a("v_add_u32 v14, v14, v15")
    a("s_lshl_b32 s45, s40, 3")
    a("v_add_u32 v14, s45, v14")
    a("v_lshlrev_b32 v3, 2, v3")
    a("v_xor_b32 v14, v14, v3")
    a("v_lshlrev_b32 v14, 4, v14")
    a("v_lshrrev_b32 v4, 1, v4")
    a("v_lshlrev_b32 v4, 3, v4")
    a("v_add3_u32 v13, v13, v14, v4")
    a(f"v_add_u32 {v(vWa0)}, {WBASE}, v13")
    a(f"v_xor_b32 {v(vWa1)}, 64, {v(vWa0)}")
    a(f"v_lshlrev_b32 {v(vSt)}, 4, v0")
    ACC = 128
    for i in range(128):
        a(f"v_mov_b32 {v(ACC+i)}, 0")
    XF = [64, 80]
    WF = [96, 104]

    def dma(it):
        st = it % 4
        out = []
        for i in range(0 if ('wonly' in FLAGS or 'nodma' in FLAGS) else 2):
            out.append([f"s_add_u32 m0, s41, {XBASE + st*16384 + i*1024}",
                        f"s_mov_b32 s47, {it*64 + i*16384}",
                        f"buffer_load_dwordx4 {v(vXd)}, s[16:19], s47 offen lds"])
        for i in range(0 if ('xonly' in FLAGS or 'nodma' in FLAGS) else 2):
            out.append([f"s_add_u32 m0, s41, {WBASE + st*16384 + i*1024}",
                        f"s_mov_b32 s47, {it*32*8192}",
                        f"buffer_load_dwordx4 {v(vWd0 if i == 0 else vWd1)}, s[20:23], s47 offen lds"])
        return out
    def reads(it, sstep, fs):
        st = it % 4
        out = []
        for nb in range(2):
            for u in range(2):
                out.append(f"ds_read_b64_tr_b16 {v(WF[fs]+4*nb+2*u,2)}, {v(vWa0 if nb == 0 else vWa1)} offset:{st*16384 + (16*sstep+4*u)*512}")
        for kb in range(4):
            out.append(f"ds_read_b128 {v(XF[fs]+4*kb,4)}, {v(vXa0 if sstep == 0 else vXa1)} offset:{st*16384 + kb*2048}")
        return out
    def mfmas(fs, vtype):
        out = []
        for kb in range(4):
            for nb in range(2):
                acc = v(ACC + (kb*2+nb)*16, 16)
                w = v(WF[fs]+4*nb, 4); x = v(XF[fs]+4*kb, 4)
                if vtype == 0: out.append(f"v_mfma_f32_32x32x16_bf16 {acc}, {w}, {x}, {acc}")
                else:          out.append(f"v_mfma_f32_32x32x16_bf16 {acc}, {x}, {w}, {acc}")
        return out

    NIT = 16
    for it in range(3):
        for grp in dma(it):
            for t in grp: a(t)
    a.vm = []
    PER = 2 if 'only' in FLAGS else 4
    a(f"s_waitcnt vmcnt({2*PER})")
    a("s_barrier")
    for t in reads(0, 0, 0): a(t)
    a("s_cmp_eq_u32 s38, 0")
    a("s_cbranch_scc0 K1_VTYPE")
    snap = a.snapshot()
    for vtype in range(2):
        if vtype == 1:
            a.label("K1_VTYPE"); a.restore(snap)
        for it in range(NIT):
            if it <= NIT-3: a(f"s_waitcnt vmcnt({PER})")
            elif it == NIT-2: a("s_waitcnt vmcnt(0)")
            if it <= NIT-2: a("s_barrier")
            fill = []
            if it + 3 < NIT:
                for grp in dma(it+3): fill += grp
            a.vm = []
            r1 = reads(it, 1, 1)
            mm0 = mfmas(0, vtype); mm1 = mfmas(1, vtype)
            if 'nomfma' in FLAGS: mm0 = mm0[:1]; mm1 = mm1[:1]
            if 'nolds' in FLAGS: r1 = []
            interleave(a, mm0, r1 + fill, lead=2)
            r0 = reads(it+1, 0, 0) if it + 1 < NIT else []
            if 'nolds' in FLAGS: r0 = []
            interleave(a, mm1, r0, lead=0)
            a.vm = []
        a("s_lshl_b32 s45, s43, 1")
        a("s_lshr_b32 s46, s40, 1")
        a("s_add_u32 s45, s45, s46")
        a("s_lshl_b32 s45, s45, 19")
        a("s_lshl_b32 s46, s37, 3")
        a("s_lshl_b32 s47, s39, 2")
        a("s_add_u32 s46, s46, s47")
        a("s_lshl_b32 s46, s46, 13")
        a("s_add_u32 s45, s45, s46")
        a("s_and_b32 s46, s40, 1")
        a("s_lshl_b32 s46, s46, 12")
        a("s_add_u32 s45, s45, s46")
        T = 64
        cnt = 0
        for kb in range(4):
            a(f"s_add_u32 s46, s45, {kb*8192}")
            for nb in range(2):
                for t in range(2):
                    r = ACC + (kb*2+nb)*16 + 8*t
                    d = T + 4*(cnt % 8); cnt += 1
                    for j in range(4):
                        a(f"v_cvt_pk_bf16_f32 {v(d+j)}, {v(r+2*j)}, {v(r+2*j+1)}")
                    if 'nostore' not in FLAGS or (kb==0 and nb==0 and t==0): a(f"buffer_store_dwordx4 {v(d,4)}, {v(vSt)}, s[24:27], s46 offen offset:{(2*nb+t)*1024}")
        a.vm = []
        if vtype == 0: a("s_branch K1_LN")
    a.label("K1_LN")
    a("s_cmp_ge_u32 s3, 2")
    a("s_cbranch_scc1 K1_END")
    a("s_waitcnt vmcnt(16)")
    emit_ln(a, data=LN, f32=64, n8=5, srd_out=32, rowreg=37, lane=0, frag_ks_stride=40, tmp=2)
    a.label("K1_END")
    a("s_endpgm")

def dpp_allreduce16(a, r, t):
    for sh in (8, 4, 2, 1):
        a(f"v_add_f32_dpp {v(t)}, {v(r)}, {v(r)} row_ror:{sh} row_mask:0xf bank_mask:0xf")
        a(f"v_mov_b32 {v(r)}, {v(t)}")

def emit_ln(a, data, f32, n8, srd_out, rowreg, lane, frag_ks_stride, tmp, packed_in=True):
    N = 8*n8
    if packed_in:
        for i in range(4*n8):
            a(f"v_lshlrev_b32 {v(f32+2*i)}, 16, {v(data+i)}")
            a(f"v_and_b32 {v(f32+2*i+1)}, 0xffff0000, {v(data+i)}")
    S, T1 = tmp, tmp+1
    a(f"v_add_f32 {v(S)}, {v(f32)}, {v(f32+1)}")
    for i in range(2, N):
        a(f"v_add_f32 {v(S)}, {v(S)}, {v(f32+i)}")
    dpp_allreduce16(a, S, T1)
    a(f"v_mul_f32 {v(S)}, {f32hex(1.0/640.0)}, {v(S)}")
    for i in range(N):
        a(f"v_sub_f32 {v(f32+i)}, {v(f32+i)}, {v(S)}")
    a(f"v_mul_f32 {v(S)}, {v(f32)}, {v(f32)}")
    for i in range(1, N):
        a(f"v_fmac_f32 {v(S)}, {v(f32+i)}, {v(f32+i)}")
    dpp_allreduce16(a, S, T1)
    a(f"v_mov_b32 {v(T1)}, {f32hex(1e-5)}")
    a(f"v_fmac_f32 {v(T1)}, {f32hex(1.0/640.0)}, {v(S)}")
    a(f"v_rsq_f32 {v(S)}, {v(T1)}")
    for i in range(N):
        a(f"v_mul_f32 {v(f32+i)}, {v(f32+i)}, {v(S)}")
    A, B = tmp, tmp+1
    a(f"v_lshrrev_b32 {v(A)}, 5, {v(rowreg)}")
    a(f"s_mov_b32 s46, {frag_ks_stride*1024}")
    a(f"v_mul_lo_u32 {v(A)}, {v(A)}, s46")
    a(f"v_and_b32 {v(B)}, 31, {v(rowreg)}")
    a(f"v_lshl_add_u32 {v(A)}, {v(B)}, 4, {v(A)}")
    a(f"v_and_b32 {v(B)}, 15, {v(lane)}")
    a(f"v_lshrrev_b32 {v(B)}, 1, {v(B)}")
    a(f"v_lshl_add_u32 {v(A)}, {v(B)}, 10, {v(A)}")
    a(f"v_and_b32 {v(B)}, 1, {v(lane)}")
    a(f"v_lshl_add_u32 {v(A)}, {v(B)}, 9, {v(A)}")
    for c in range(n8):
        for j in range(4):
            a(f"v_cvt_pk_bf16_f32 {v(data+4*c+j)}, {v(f32+8*c+2*j)}, {v(f32+8*c+2*j+1)}")
        a(f"s_mov_b32 s46, {c*8192}")
        a(f"buffer_store_dwordx4 {v(data+4*c,4)}, {v(A)}, {s(srd_out,4)}, s46 offen")
```

```python
from gen_common import *
import math, os
FLAGS = os.environ.get('K2FLAGS', '')

KBASE = 0
VBASE = 49152
SCR = 0

O_ = 192; QA = 160; QB = 128; S_ = [96, 112]; P_ = [80, 88]; POOL = 48; TMP = 32
vLane = 0; vL16 = 1; vKa = 2; vVa = 3; vM = 4; vMC = 5; vL = [6, 7]; vZb = 8; vZ = 9; vDma = 10; vT0 = 11; vT1 = 12; vT2 = 13; vSt = 14
vWa = [16, 17, 18, 19]; vXo = 20; vWd = 21; vNeg = 22
LOOK = 4

def MF(d, a_, b_, c_):
    return f"v_mfma_f32_32x32x16_bf16 {d}, {a_}, {b_}, {c_}"

def gen_k2(a):
    name = "k2_kernel"
    kernel_header(a, name)
    a("s_cmp_ge_u32 s2, 256")
    a("s_cbranch_scc1 K2_END")
    a("s_load_dwordx2 s[42:43], s[0:1], 16")
    a("s_load_dwordx2 s[44:45], s[0:1], 104")
    a("v_lshrrev_b32 v1, 6, v0")
    a("v_and_b32 v0, 63, v0")
    a("v_readfirstlane_b32 s3, v1")
    a("s_lshr_b32 s4, s3, 2")
    a("s_and_b32 s5, s3, 3")
    an = "s6"
    a("s_and_b32 s6, s2, 7")
    a("s_lshl_b32 s6, s6, 2")
    a("s_lshr_b32 s7, s2, 3")
    a("s_and_b32 s46, s7, 3")
    a("s_add_u32 s6, s6, s46")
    a("s_lshr_b32 s7, s2, 5")
    a("s_lshl_b32 s40, s3, 11")
    a(f"s_mov_b32 s36, {f32hex(math.log2(math.e)/math.sqrt(128.0))}")
    a(f"s_mov_b32 s37, {f32hex(2.0**60)}")
    a("s_waitcnt lgkmcnt(0)")
    srd(a, 8, 44, 64*40*1024, add=WS_XN)
    srd(a, 12, 42, 640*4096*2)
    srd(a, 16, 44, 0x1000000, add=WS_KIMG)
    srd(a, 20, 44, 0x1000000, add=WS_VIMG)
    srd(a, 24, 44, 0x1000000, add=WS_CTX)
    a(f"v_lshlrev_b32 {v(vL16)}, 4, v0")
    a("s_sub_u32 s47, 15, s7")
    a("s_cmp_eq_u32 s4, 0")
    a("s_cselect_b32 s46, s47, s7")
    a("s_lshl_b32 s46, s46, 2")
    a("s_add_u32 s46, s46, s5")
    a("s_mul_i32 s46, s46, 40960")
    a("v_lshrrev_b32 v11, 4, v0")
    a("v_and_b32 v12, 15, v0")
    a("v_lshlrev_b32 v13, 2, v11")
    a("v_xor_b32 v12, v12, v13")
    a("v_lshlrev_b32 v12, 4, v12")
    a("s_lshl_b32 s47, s3, 3")
    a("v_add_u32 v11, s47, v11")
    a("v_lshlrev_b32 v11, 13, v11")
    a("s_lshl_b32 s47, s6, 8")
    a(f"v_add3_u32 {v(vWd)}, v11, v12, s47")
    a("v_and_b32 v11, 15, v0")
    a("v_lshrrev_b32 v12, 2, v11")
    a("v_and_b32 v13, 3, v11")
    a("v_lshrrev_b32 v14, 5, v0")
    a("v_lshlrev_b32 v14, 3, v14")
    a("v_add_u32 v14, v14, v12")
    a("v_lshlrev_b32 v14, 8, v14")
    a("v_lshrrev_b32 v15, 4, v0")
    a("v_and_b32 v15, 1, v15")
    a("v_lshlrev_b32 v15, 1, v15")
    a("v_and_b32 v11, 1, v13")
    a("v_add_u32 v15, v15, v11")
    a("v_lshlrev_b32 v12, 2, v12")
    a("v_xor_b32 v15, v15, v12")
    a("v_lshlrev_b32 v15, 4, v15")
    a("v_lshrrev_b32 v13, 1, v13")
    a("v_lshlrev_b32 v13, 3, v13")
    a(f"v_add3_u32 {v(vWa[0])}, v14, v15, v13")
    for db in range(1, 4):
        a(f"v_xor_b32 {v(vWa[db])}, {db*64}, {v(vWa[0])}")
    ACC = O_
    for i in range(64): a(f"v_mov_b32 {v(ACC+i)}, 0")
    XB = 96
    WF = [32, 48]
    NST = 10
    def wdma(st):
        out = []
        for i in range(2):
            out += [f"s_add_u32 m0, s40, {(st % 4)*16384 + i*1024 - 0}",
                    f"s_mov_b32 s47, {st*64*8192 + i*4*8192}",
                    f"buffer_load_dwordx4 {v(vWd)}, s[12:15], s47 offen lds"]
        return out
    def xload(ks):
        return [f"s_add_u32 s47, s46, {ks*1024}",
                f"buffer_load_dwordx4 {v(XB + 4*(ks % 8), 4)}, {v(vL16)}, s[8:11], s47 offen"]
    def wreads(ks, fs):
        st, ss = divmod(ks, 4)
        out = []
        for db in range(4):
            for u in range(2):
                out.append(f"ds_read_b64_tr_b16 {v(WF[fs]+4*db+2*u,2)}, {v(vWa[db])} offset:{(st % 4)*16384 + (16*ss+4*u)*256}")
        return out
    for st in range(3):
        for t in wdma(st): a(t)
    a.vm = []
    for ks in range(7):
        for t in xload(ks): a(t)
    order = ['d0']*2 + ['d1']*2 + ['d2']*2 + [f'x{k}' for k in range(7)]
    def wait_for(tag):
        idx = max(i for i, t in enumerate(order) if t == tag)
        n = len(order) - 1 - idx
        a(f"s_waitcnt vmcnt({n})")
    wait_for('d0')
    a("s_barrier")
    for t in wreads(0, 0): a(t)
    for st in range(NST):
        if st + 1 < NST:
            wait_for(f'd{st+1}')
            a("s_barrier")
        fill0 = []
        if st + 3 < NST:
            fill0 = wdma(st + 3);
        for ss in range(4):
            ks = st*4 + ss
            fs = ks % 2
            mm = [MF(v(ACC+16*db,16), v(WF[fs]+4*db,4), v(XB+4*(ks % 8),4), v(ACC+16*db,16)) for db in range(4)]
            wait_for(f'x{ks}')
            fill = []
            if ss == 0 and fill0:
                fill += fill0; order += [f'd{st+3}']*2
            if ks + 1 < NST*4: fill += wreads(ks+1, 1-fs)
            if ks + 7 < NST*4:
                fill += xload(ks+7); order.append(f'x{ks+7}')
            save = a.vm; a.vm = []
            interleave(a, mm, fill)
            a.vm = []
    a("s_barrier")
    for db in range(4):
        for t in range(2):
            for j in range(4):
                r = ACC + 16*db + 8*t + 2*j
                a(f"v_cvt_pk_bf16_f32 {v(QA + 4*(2*db+t) + j)}, {v(r)}, {v(r+1)}")
    a("s_lshl_b32 s46, s3, 13")
    a(f"v_add_u32 {v(vT0)}, s46, {v(vL16)}")
    for f in range(8):
        a(f"ds_write_b128 {v(vT0)}, {v(QA+4*f,4)} offset:{SCR + f*1024}")
    a("s_waitcnt lgkmcnt(0)")
    a("s_barrier")
    a("s_lshl_b32 s46, s5, 13")
    a(f"v_add_u32 {v(vT0)}, s46, {v(vL16)}")
    for f in range(8):
        a(f"ds_read_b128 {v(QA+4*f,4)}, {v(vT0)} offset:{SCR + f*1024}")
        a(f"ds_read_b128 {v(QB+4*f,4)}, {v(vT0)} offset:{SCR + 32768 + f*1024}")
    a("s_waitcnt lgkmcnt(0)")
    a("s_barrier")
    a(f"v_lshrrev_b32 {v(vT0)}, 5, v0")
    a(f"v_and_b32 {v(vT1)}, 31, v0")
    a(f"v_lshlrev_b32 {v(vT0)}, 3, {v(vT0)}")
    a(f"v_sub_u32 {v(vT1)}, {v(vT1)}, {v(vT0)}")
    a("s_sub_u32 s46, s5, s4")
    a("s_lshl_b32 s46, s46, 5")
    a(f"v_add_u32 {v(vNeg)}, s46, {v(vT1)}")
    a("s_lshl_b32 s41, s4, 13")
    a(f"v_add_u32 {v(vSt)}, s41, {v(vL16)}")
    a(f"v_add_u32 {v(vDma)}, s40, {v(vL16)}")
    a("s_lshl_b32 s48, s6, 19")
    a("s_mov_b32 s39, 0")
    a("s_sub_u32 s38, 15, s7")
    a.label("K2_BLOCK")
    a("s_lshl_b32 s28, s38, 1")
    a("s_add_u32 s28, s28, 2")
    a("s_lshl_b32 s46, s38, 7")
    a(f"v_add_u32 {v(vZb)}, s46, {v(vNeg)}")
    for i in range(64): a(f"v_mov_b32 {v(O_+i)}, 0")
    a(f"v_mov_b32 {v(vM)}, {f32hex(-1e30)}")
    a(f"v_mul_f32 {v(vMC)}, s36, {v(vM)}")
    a(f"v_mov_b32 {v(vL[0])}, 0")
    a(f"v_mov_b32 {v(vL[1])}, 0")
    def dmaK():
        return ["s_add_u32 m0, s32, s40",
                f"buffer_load_dwordx4 {v(vDma)}, s[16:19], s34 offen lds",
                f"buffer_load_dwordx4 {v(vDma)}, s[16:19], s34 offen offset:1024 lds",
                "s_add_u32 s34, s34, 16384",
                "s_add_u32 s32, s32, 16384",
                f"s_cmp_eq_u32 s32, {KBASE+49152}",
                f"s_cselect_b32 s32, {KBASE}, s32"]
    def dmaV():
        return ["s_add_u32 m0, s33, s40",
                f"buffer_load_dwordx4 {v(vDma)}, s[20:23], s35 offen lds",
                f"buffer_load_dwordx4 {v(vDma)}, s[20:23], s35 offen offset:1024 lds",
                "s_add_u32 s35, s35, 16384",
                "s_add_u32 s33, s33, 16384",
                f"s_cmp_eq_u32 s33, {VBASE+65536}",
                f"s_cselect_b32 s33, {VBASE}, s33"]
    a(f"s_mov_b32 s32, {KBASE}")
    a(f"s_mov_b32 s33, {VBASE}")
    a("s_mov_b32 s34, s48")
    a("s_mov_b32 s35, s48")
    for t in dmaK() + dmaK() + dmaV(): a(t)
    a.vm = []
    a(f"s_mov_b32 s30, {KBASE}")
    a(f"s_mov_b32 s31, {VBASE}")
    a("s_mov_b32 s29, 0")
    def adv_k():
        return ["s_add_u32 s30, s30, 16384", f"s_cmp_eq_u32 s30, {KBASE+49152}", f"s_cselect_b32 s30, {KBASE}, s30"]
    def adv_v():
        return ["s_add_u32 s31, s31, 16384", f"s_cmp_eq_u32 s31, {VBASE+65536}", f"s_cselect_b32 s31, {VBASE}, s31"]

    slowsites = []
    def iteration(par, do_pv, do_qk, sm, masked, next_pv, pre):
        a("s_waitcnt vmcnt(4)")
        a("s_barrier")
        frags = []
        if do_pv:
            for t in range(2):
                for db in range(4):
                    frags.append(('V', db, t))
        if do_qk:
            for s_ in range(8): frags.append(('K', s_))
        nf = len(frags)
        def rd(k, nxt=False):
            f = ('V', k % 4, k // 4) if nxt else frags[k]
            buf = POOL + 4*(k % 8)
            if f[0] == 'V': return f"ds_read_b128 {v(buf,4)}, {v(vVa)} offset:{(f[1]*2+f[2])*1024}"
            return f"ds_read_b128 {v(buf,4)}, {v(vKa)} offset:{f[1]*1024}"
        def mf(k):
            f = frags[k]; buf = v(POOL + 4*(k % 8), 4)
            if f[0] == 'V':
                return MF(v(O_+16*f[1],16), buf, v(P_[1-par]+4*f[2],4), v(O_+16*f[1],16))
            sreg = v(S_[1-par],16)
            return MF(sreg, buf, v(QA+4*f[1],4), "0" if f[1] == 0 else sreg)
        head = []
        if do_qk:
            head.append(f"v_add_u32 {v(vKa)}, s30, {v(vSt)}")
            head += adv_k()
        for t in head: a(t)
        if not pre:
            for k in range(min(LOOK, nf)): a(rd(k))
        dm = dmaK() + dmaV()
        val = []
        S = S_[par]; T = TMP; lo, ln = vL[1-par], vL[par]
        if sm:
            if masked:
                val.append(f"v_subrev_u32 {v(vZ)}, s29, {v(vZb)}")
                for r in range(16):
                    base = 16*(r//8) + (r % 8)
                    val.append(f"v_cmp_le_i32 vcc, {base}, {v(vZ)}")
                    val.append(f"v_cndmask_b32 {v(S+r)}, {v(vT2)}, {v(S+r)}, vcc")
            seq = []
            for r in range(16 + 3):
                if r < 16: seq.append(f"v_fma_f32 {v(T+r)}, {v(S+r)}, s36, -{v(vMC)}")
                if 0 <= r-1 < 16: seq.append(f"v_exp_f32 {v(T+r-1)}, {v(T+r-1)}")
                if 0 <= r-3 < 16:
                    q = r-3
                    seq.append(f"v_add_f32 {v(ln)}, {v(lo if q == 0 else ln)}, {v(T+q)}")
                    if q % 2 == 1: seq.append(f"v_cvt_pk_bf16_f32 {v(P_[par]+q//2)}, {v(T+q-1)}, {v(T+q)}")
            val += seq
        fillers = [[] for _ in range(max(nf, 1))]
        for k in range(nf):
            kk = k + LOOK
            if kk < nf:
                if frags[kk][0] == 'V' or True: fillers[k].append(rd(kk))
            elif next_pv:
                if kk == nf:
                    fillers[k].append(f"v_add_u32 {v(vVa)}, s31, {v(vSt)}")
                    fillers[k] += adv_v()
                fillers[k].append(rd(kk - nf, nxt=True))
        for i, t in enumerate(dm): fillers[min(i // 2, nf-1)].append(t) if nf else a(t)
        nv = len(val)
        if nf:
            di = 0
            for k in range(nf):
                want = (nv * (k+1)) // nf
                fillers[k] += val[di:want]; di = want
            for k in range(nf):
                a(mf(k))
                for t in fillers[k]: a(t)
        else:
            for t in val: a(t)
        a.vm = []
        if sm:
            a("s_add_u32 s29, s29, 64")
            lab = a.newlabel("K2_SLOW"); ret = a.newlabel("K2_RET")
            a(f"v_cmp_nle_f32 vcc, {v(ln)}, {v(vT1)}")
            a(f"s_cbranch_vccnz {lab}")
            a.label(ret)
            slowsites.append((lab, ret, par, a.snapshot()))

    a(f"v_mov_b32 {v(vT2)}, 0xff800000")
    a(f"v_mov_b32 {v(vT1)}, s37")
    iteration(1, False, True, False, False, False, False)
    iteration(0, False, True, True, True, True, False)
    a("s_cmp_eq_u32 s28, 2")
    a("s_cbranch_scc1 K2_E")
    a("s_sub_u32 s49, s28, 4")
    a("s_lshr_b32 s49, s49, 1")
    snap = a.snapshot()
    a("s_cmp_eq_u32 s49, 0")
    a("s_cbranch_scc1 K2_C3")
    a.label("K2_LOOP")
    iteration(1, True, True, True, False, True, True)
    iteration(0, True, True, True, False, True, True)
    a("s_sub_u32 s49, s49, 1")
    a("s_cmp_lg_u32 s49, 0")
    a("s_cbranch_scc1 K2_LOOP")
    assert a.snapshot() == snap, (a.snapshot(), snap)
    a.label("K2_C3")
    iteration(1, True, True, True, False, True, True)
    iteration(0, True, True, True, True, True, True)
    assert a.snapshot() == snap
    a.label("K2_E")
    iteration(1, True, False, True, True, True, True)
    iteration(0, True, False, False, False, False, True)
    a("s_waitcnt vmcnt(0) lgkmcnt(0)")
    a("s_barrier")
    lf = vL[1]
    a(f"v_mov_b32 {v(vT0)}, {v(lf)}")
    a(f"v_permlane32_swap_b32 {v(lf)}, {v(vT0)}")
    a(f"v_add_f32 {v(lf)}, {v(lf)}, {v(vT0)}")
    a("s_mul_i32 s46, s3, 9216")
    a(f"v_add_u32 {v(vT0)}, s46, {v(vL16)}")
    a("s_cmp_eq_u32 s4, 0")
    a("s_cbranch_scc0 K2_SEND1")
    snap2 = a.snapshot()
    for variant in range(2):
        if variant == 1:
            a.label("K2_SEND1"); a.restore(snap2)
        src = O_ + (32 if variant == 0 else 0)
        for f in range(8):
            a(f"ds_write_b128 {v(vT0)}, {v(src+4*f,4)} offset:{SCR + f*1024}")
        if variant == 0: a("s_branch K2_SENT")
    a.label("K2_SENT")
    a(f"v_lshrrev_b32 {v(vZ)}, 2, {v(vL16)}")
    a(f"v_add_u32 {v(vZ)}, s46, {v(vZ)}")
    a(f"ds_write_b32 {v(vZ)}, {v(vM)} offset:{SCR + 8192}")
    a(f"ds_write_b32 {v(vZ)}, {v(lf)} offset:{SCR + 8448}")
    a("s_waitcnt lgkmcnt(0)")
    a("s_barrier")
    a("s_xor_b32 s46, s3, 4")
    a("s_mul_i32 s46, s46, 9216")
    a(f"v_add_u32 {v(vT0)}, s46, {v(vL16)}")
    a(f"v_lshrrev_b32 {v(vZ)}, 2, {v(vL16)}")
    a(f"v_add_u32 {v(vZ)}, s46, {v(vZ)}")
    R = 32
    mo, lo_ = 64, 65
    a(f"ds_read_b32 {v(mo)}, {v(vZ)} offset:{SCR + 8192}")
    a(f"ds_read_b32 {v(lo_)}, {v(vZ)} offset:{SCR + 8448}")
    for f in range(8):
        a(f"ds_read_b128 {v(R+4*f,4)}, {v(vT0)} offset:{SCR + f*1024}")
    mt, ao, ap = 66, 67, 68
    a(f"v_max_f32 {v(mt)}, {v(vM)}, {v(mo)}")
    a(f"v_sub_f32 {v(ao)}, {v(vM)}, {v(mt)}")
    a(f"v_sub_f32 {v(ap)}, {v(mo)}, {v(mt)}")
    a(f"v_mul_f32 {v(ao)}, s36, {v(ao)}")
    a(f"v_mul_f32 {v(ap)}, s36, {v(ap)}")
    a(f"v_exp_f32 {v(ao)}, {v(ao)}")
    a(f"v_exp_f32 {v(ap)}, {v(ap)}")
    a(f"v_mul_f32 {v(lf)}, {v(lf)}, {v(ao)}")
    a(f"v_fmac_f32 {v(lf)}, {v(lo_)}, {v(ap)}")
    a(f"v_rcp_f32 {v(lf)}, {v(lf)}")
    a(f"v_mul_f32 {v(ao)}, {v(ao)}, {v(lf)}")
    a(f"v_mul_f32 {v(ap)}, {v(ap)}, {v(lf)}")
    a("s_lshl_b32 s46, s38, 2")
    a("s_add_u32 s46, s46, s5")
    a("s_lshl_b32 s46, s46, 18")
    a("s_lshl_b32 s47, s6, 13")
    a("s_add_u32 s46, s46, s47")
    a("s_lshl_b32 s47, s4, 12")
    a("s_add_u32 s46, s46, s47")
    a("s_cmp_eq_u32 s4, 0")
    a("s_cbranch_scc0 K2_FIN1")
    snap3 = a.snapshot()
    for variant in range(2):
        if variant == 1:
            a.label("K2_FIN1"); a.restore(snap3)
        own = O_ + (0 if variant == 0 else 32)
        for i in range(32):
            a(f"v_mul_f32 {v(own+i)}, {v(own+i)}, {v(ao)}")
            a(f"v_fmac_f32 {v(own+i)}, {v(R+i)}, {v(ap)}")
        for f in range(4):
            d = 96 + 4*f
            for j in range(4):
                a(f"v_cvt_pk_bf16_f32 {v(d+j)}, {v(own+8*f+2*j)}, {v(own+8*f+2*j+1)}")
            a(f"buffer_store_dwordx4 {v(d,4)}, {v(vL16)}, s[24:27], s46 offen offset:{f*1024}")
        a.vm = []
        if variant == 0: a("s_branch K2_FIN")
    a.label("K2_FIN")
    a("s_add_u32 s39, s39, 1")
    a("s_cmp_eq_u32 s39, 2")
    a("s_cbranch_scc1 K2_END")
    a("s_barrier")
    for i in range(32): a(f"v_mov_b32 {v(QA+i)}, {v(QB+i)}")
    a("s_mov_b32 s38, s7")
    a("s_branch K2_BLOCK")
    a.label("K2_END")
    a("s_endpgm")
    for (lab, ret, par, snap_) in slowsites:
        a.label(lab); a.restore(snap_)
        S = S_[par]; T = TMP; lo, ln = vL[1-par], vL[par]
        x = vT0; y = vZ
        a(f"v_max3_f32 {v(x)}, {v(S)}, {v(S+1)}, {v(S+2)}")
        for r in range(3, 15, 2):
            a(f"v_max3_f32 {v(x)}, {v(x)}, {v(S+r)}, {v(S+r+1)}")
        a(f"v_max3_f32 {v(x)}, {v(x)}, {v(S+15)}, {v(vM)}")
        a(f"v_mov_b32 {v(y)}, {v(x)}")
        a(f"v_permlane32_swap_b32 {v(x)}, {v(y)}")
        a(f"v_max_f32 {v(x)}, {v(x)}, {v(y)}")
        a(f"v_sub_f32 {v(y)}, {v(vM)}, {v(x)}")
        a(f"v_mul_f32 {v(y)}, s36, {v(y)}")
        a(f"v_exp_f32 {v(y)}, {v(y)}")
        a(f"v_mov_b32 {v(vM)}, {v(x)}")
        a(f"v_mul_f32 {v(vMC)}, s36, {v(x)}")
        for i in range(64): a(f"v_mul_f32 {v(O_+i)}, {v(O_+i)}, {v(y)}")
        a(f"v_mul_f32 {v(ln)}, {v(lo)}, {v(y)}")
        for r in range(16): a(f"v_fma_f32 {v(T+r)}, {v(S+r)}, s36, -{v(vMC)}")
        for r in range(16): a(f"v_exp_f32 {v(T+r)}, {v(T+r)}")
        for r in range(16): a(f"v_add_f32 {v(ln)}, {v(ln)}, {v(T+r)}")
        for r in range(8): a(f"v_cvt_pk_bf16_f32 {v(P_[par]+r)}, {v(T+2*r)}, {v(T+2*r+1)}")
        a(f"s_branch {ret}")
```

```python
from gen_common import *
from gen_k1 import emit_ln
import math

def MF(d, a_, b_, c_):
    return f"v_mfma_f32_32x32x16_bf16 {d}, {a_}, {b_}, {c_}"

def gen_gemm160(a, name, mode):
    cfg = dict(
        oproj=dict(nwg=256, xoff=WS_CTX, nks=256, warg=40, N=640, K=4096, nst=16, out=WS_PART),
        ffn1=dict(nwg=176, xoff=WS_HN, nks=40, warg=56, N=1728, K=640, nst=10, out=WS_H1),
        ffn2=dict(nwg=256, xoff=WS_H1, nks=108, warg=72, N=640, K=1728, nst=7, out=WS_PART2))[mode]
    U = name.upper()
    N = cfg['N']; NST = cfg['nst']; NKS = cfg['nks']
    kernel_header(a, name)
    a(f"s_cmp_ge_u32 s2, {cfg['nwg']}")
    a(f"s_cbranch_scc1 {U}_END")
    a(f"s_load_dwordx2 s[4:5], s[0:1], {cfg['warg']}")
    a("s_load_dwordx2 s[6:7], s[0:1], 104")
    if mode == 'ffn1': a("s_load_dwordx2 s[24:25], s[0:1], 64")
    a("v_lshrrev_b32 v1, 6, v0")
    a("v_and_b32 v0, 63, v0")
    a("v_readfirstlane_b32 s3, v1")
    if mode == 'ffn1':
        a("s_mul_hi_u32 s30, s2, 0x1745d175")
        a("s_mul_i32 s31, s30, 11")
        a("s_sub_u32 s31, s2, s31")
        a("s_mov_b32 s32, 0")
    else:
        a("s_and_b32 s33, s2, 7")
        a("s_lshl_b32 s33, s33, 1")
        a("s_lshr_b32 s34, s2, 3")
        a("s_and_b32 s34, s34, 1")
        a("s_add_u32 s33, s33, s34")
        a("s_and_b32 s31, s33, 3")
        a("s_lshr_b32 s32, s33, 2")
        a("s_lshr_b32 s30, s2, 4")
    a("s_waitcnt lgkmcnt(0)")
    srd(a, 8, 6, 64*NKS*1024, add=cfg['xoff'])
    srd(a, 12, 4, cfg['K']*N*2)
    if mode == 'ffn1':
        srd(a, 16, 6, 64*108*1024, add=cfg['out'])
        srd(a, 20, 24, 1728*2)
    else:
        srd(a, 16, 6, 4*PART_SZ, add=cfg['out'])
    a("s_lshl_b32 s35, s30, 2")
    a("s_add_u32 s35, s35, s3")
    a(f"s_mul_i32 s36, s35, {NKS*1024}")
    a(f"s_mul_i32 s37, s32, {NST*4*1024}")
    a("s_add_u32 s36, s36, s37")
    a(f"s_mul_i32 s37, s32, {NST*64*N*2}")
    a("s_mul_i32 s38, s31, 320")
    a("s_add_u32 s37, s37, s38")
    a("s_mul_i32 s39, s3, 5120")
    vL16 = 1; vWd = [2, 3, 4, 5, 6]; vWa = [7, 8]
    a(f"v_lshlrev_b32 {v(vL16)}, 4, v0")
    a("s_mul_i32 s40, s3, 320")
    a(f"s_mov_b32 s41, {N*2}")
    a("s_mov_b32 s42, 0xcccccccd")
    for i in range(5):
        a(f"v_add_u32 v10, s40, v0")
        if i: a(f"v_add_u32 v10, {64*i}, v10")
        a("v_mul_hi_u32 v11, v10, s42")
        a("v_lshrrev_b32 v11, 4, v11")
        a("v_mul_u32_u24 v12, 20, v11")
        a("v_sub_u32 v12, v10, v12")
        a("v_mul_lo_u32 v11, v11, s41")
        a(f"v_lshl_add_u32 {v(vWd[i])}, v12, 4, v11")
    a("v_and_b32 v10, 15, v0")
    a("v_lshrrev_b32 v11, 2, v10")
    a("v_and_b32 v12, 3, v10")
    a("v_lshrrev_b32 v13, 5, v0")
    a("v_lshl_add_u32 v13, v13, 3, v11")
    a("v_mul_u32_u24 v13, 320, v13")
    a("v_lshrrev_b32 v14, 4, v0")
    a("v_and_b32 v14, 1, v14")
    a("v_lshl_add_u32 v13, v14, 5, v13")
    a("v_and_b32 v14, 1, v12")
    a("v_lshl_add_u32 v13, v14, 4, v13")
    a("v_lshrrev_b32 v14, 1, v12")
    a(f"v_lshl_add_u32 {v(vWa[0])}, v14, 3, v13")
    a(f"v_add_u32 {v(vWa[1])}, 40960, {v(vWa[0])}")
    ACC = 96
    for i in range(80): a(f"v_mov_b32 {v(ACC+i)}, 0")
    XB = 16; WF = [48, 68]
    order = []
    def wdma(st):
        out = []
        for i in range(5):
            out += [f"s_add_u32 m0, s39, {(st % 4)*20480 + i*1024}",
                    f"s_add_u32 s43, s37, {st*64*N*2}",
                    f"buffer_load_dwordx4 {v(vWd[i])}, s[12:15], s43 offen lds"]
        return out
    def xload(ks):
        return [f"s_add_u32 s43, s36, {ks*1024}",
                f"buffer_load_dwordx4 {v(XB + 4*(ks % 8), 4)}, {v(vL16)}, s[8:11], s43 offen"]
    def wreads(ks, fs):
        st, ss = divmod(ks, 4)
        sl = st % 4
        out = []
        for nb in range(5):
            for u in range(2):
                out.append(f"ds_read_b64_tr_b16 {v(WF[fs]+4*nb+2*u,2)}, {v(vWa[sl//2])} offset:{(sl % 2)*20480 + (16*ss+4*u)*320 + nb*64}")
        return out
    def wait_for(tag):
        idx = max(i for i, t in enumerate(order) if t == tag)
        a(f"s_waitcnt vmcnt({len(order) - 1 - idx})")
    for st in range(3):
        for t in wdma(st): a(t)
        order += [f'd{st}']*5
    a.vm = []
    for ks in range(7):
        for t in xload(ks): a(t)
        order.append(f'x{ks}')
    wait_for('d0')
    a("s_barrier")
    for t in wreads(0, 0): a(t)
    NKSTEP = NST*4
    for st in range(NST):
        if st + 1 < NST:
            wait_for(f'd{st+1}')
            a("s_barrier")
        for ss in range(4):
            ks = st*4 + ss; fs = ks % 2
            mm = [MF(v(ACC+16*nb,16), v(WF[fs]+4*nb,4), v(XB+4*(ks % 8),4), v(ACC+16*nb,16)) for nb in range(5)]
            wait_for(f'x{ks}')
            fill = []
            if ss == 0 and st + 3 < NST:
                fill += wdma(st+3); order += [f'd{st+3}']*5
            if ks + 1 < NKSTEP: fill += wreads(ks+1, 1-fs)
            if ks + 7 < NKSTEP:
                fill += xload(ks+7); order.append(f'x{ks+7}')
            a.vm = []
            interleave(a, mm, fill)
            a.vm = []
    if mode != 'ffn1':
        a("v_and_b32 v10, 31, v0")
        a("s_lshl_b32 s40, s35, 5")
        a("v_add_u32 v10, s40, v10")
        a("v_mul_u32_u24 v10, 2560, v10")
        a("v_lshrrev_b32 v11, 5, v0")
        a("v_lshl_add_u32 v10, v11, 5, v10")
        a(f"s_mul_i32 s40, s32, {PART_SZ}")
        a("s_mul_i32 s41, s31, 640")
        a("s_add_u32 s40, s40, s41")
        for nb in range(5):
            for t in range(2):
                r = ACC + 16*nb + 8*t
                off = (32*nb + 16*t)*4
                a(f"buffer_store_dwordx4 {v(r,4)}, v10, s[16:19], s40 offen offset:{off}")
                a(f"buffer_store_dwordx4 {v(r+4,4)}, v10, s[16:19], s40 offen offset:{off+16}")
    else:
        a("v_lshrrev_b32 v11, 5, v0")
        a("v_lshlrev_b32 v11, 4, v11")
        a("v_add_u32 v11, s38, v11")
        B = 16
        for f in range(10):
            a(f"buffer_load_dwordx4 {v(B+4*f,4)}, v11, s[20:23], 0 offen offset:{f*32}")
        c1 = -2.0*math.sqrt(2.0/math.pi)*math.log2(math.e); c2 = c1*0.044715
        a(f"s_mov_b32 s44, {f32hex(c1)}")
        a(f"s_mov_b32 s45, {f32hex(c2)}")
        a(f"s_mul_i32 s40, s35, {108*1024}")
        a("s_mul_i32 s41, s31, 10240")
        a("s_add_u32 s40, s40, s41")
        T = 56
        for f in range(10):
            nb, t = divmod(f, 2)
            r = ACC + 16*nb + 8*t
            for j in range(4):
                a(f"v_lshlrev_b32 {v(T+2*j)}, 16, {v(B+4*f+j)}")
                a(f"v_and_b32 {v(T+2*j+1)}, 0xffff0000, {v(B+4*f+j)}")
            for j in range(8): a(f"v_add_f32 {v(r+j)}, {v(r+j)}, {v(T+j)}")
            for j in range(8): a(f"v_mul_f32 {v(T+j)}, {v(r+j)}, {v(r+j)}")
            for j in range(8): a(f"v_fma_f32 {v(T+j)}, {v(T+j)}, s45, {v(T+8)}" if False else f"v_mul_f32 {v(T+j)}, s45, {v(T+j)}")
            for j in range(8): a(f"v_add_f32 {v(T+j)}, s44, {v(T+j)}")
            for j in range(8): a(f"v_mul_f32 {v(T+j)}, {v(T+j)}, {v(r+j)}")
            for j in range(8): a(f"v_exp_f32 {v(T+j)}, {v(T+j)}")
            for j in range(8): a(f"v_add_f32 {v(T+j)}, 1.0, {v(T+j)}")
            for j in range(8): a(f"v_rcp_f32 {v(T+j)}, {v(T+j)}")
            for j in range(8): a(f"v_mul_f32 {v(T+j)}, {v(T+j)}, {v(r+j)}")
            D = 64 + 4*(f % 4)
            for j in range(4): a(f"v_cvt_pk_bf16_f32 {v(D+j)}, {v(T+2*j)}, {v(T+2*j+1)}")
            a(f"s_mul_i32 s41, s31, 10")
            a(f"s_add_u32 s41, s41, {f}")
            a("s_cmp_ge_u32 s41, 108")
            lab = a.newlabel(U + "_SK")
            a(f"s_cbranch_scc1 {lab}")
            a(f"s_add_u32 s42, s40, {f*1024}")
            a(f"buffer_store_dwordx4 {v(D,4)}, {v(vL16)}, s[16:19], s42 offen")
            a.label(lab)
    a.label(f"{U}_END")
    a("s_endpgm")

def gen_reduce(a, name, mode):
    U = name.upper()
    kernel_header(a, name)
    a("s_cmp_ge_u32 s2, 256")
    a(f"s_cbranch_scc1 {U}_END")
    a("s_load_dwordx2 s[6:7], s[0:1], 104")
    if mode == 'ln2':
        a("s_load_dwordx2 s[4:5], s[0:1], 0")
    else:
        a("s_load_dwordx2 s[4:5], s[0:1], 80")
        a("s_load_dwordx2 s[24:25], s[0:1], 88")
    a("v_lshrrev_b32 v1, 6, v0")
    a("v_and_b32 v0, 63, v0")
    a("v_readfirstlane_b32 s3, v1")
    a("s_waitcnt lgkmcnt(0)")
    srd(a, 8, 6, 4*PART_SZ, add=WS_PART if mode == 'ln2' else WS_PART2)
    srd(a, 16, 6, PART_SZ, add=WS_H)
    if mode == 'ln2':
        srd(a, 12, 4, 2048*640*2)
        srd(a, 20, 6, 64*40*1024, add=WS_HN)
    else:
        srd(a, 12, 4, 640*2)
        srd(a, 20, 24, 2048*640*2)
    a("v_lshrrev_b32 v2, 4, v0")
    a("v_and_b32 v3, 15, v0")
    a("s_lshl_b32 s30, s2, 3")
    a("s_lshl_b32 s31, s3, 2")
    a("s_add_u32 s30, s30, s31")
    a("v_add_u32 v37, s30, v2")
    a("v_mul_u32_u24 v4, 2560, v37")
    a("v_lshl_add_u32 v4, v3, 5, v4")
    a("v_mul_u32_u24 v5, 1280, v37")
    a("v_lshl_add_u32 v5, v3, 4, v5")
    F = 64
    L = 104
    XD = 40
    if mode == 'ln2':
        for c in range(5): a(f"buffer_load_dwordx4 {v(XD+4*c,4)}, v5, s[12:15], 0 offen offset:{256*c}")
    else:
        a("v_lshlrev_b32 v6, 4, v3")
        for c in range(5): a(f"buffer_load_dwordx4 {v(XD+4*c,4)}, v6, s[12:15], 0 offen offset:{256*c}")
    for sk in range(4):
        dst = F if sk == 0 else L + 40*(sk-1)
        a(f"s_mov_b32 s31, {sk*PART_SZ}")
        for c in range(5):
            for hh in range(2):
                a(f"buffer_load_dwordx4 {v(dst+8*c+4*hh,4)}, v4, s[8:11], s31 offen offset:{512*c+16*hh}")
    if mode == 'fin':
        HB = 224
    for sk in range(1, 4):
        for i in range(40): a(f"v_add_f32 {v(F+i)}, {v(F+i)}, {v(L+40*(sk-1)+i)}")
    if mode == 'fin':
        for c in range(5):
            for hh in range(2):
                a(f"buffer_load_dwordx4 {v(L+8*c+4*hh,4)}, v4, s[16:19], 0 offen offset:{512*c+16*hh}")
    for i in range(20):
        a(f"v_lshlrev_b32 v6, 16, {v(XD+i)}")
        a(f"v_add_f32 {v(F+2*i)}, {v(F+2*i)}, v6")
        a(f"v_and_b32 v7, 0xffff0000, {v(XD+i)}")
        a(f"v_add_f32 {v(F+2*i+1)}, {v(F+2*i+1)}, v7")
    if mode == 'ln2':
        for c in range(5):
            for hh in range(2):
                a(f"buffer_store_dwordx4 {v(F+8*c+4*hh,4)}, v4, s[16:19], 0 offen offset:{512*c+16*hh}")
        emit_ln(a, data=XD, f32=F, n8=5, srd_out=20, rowreg=37, lane=0, frag_ks_stride=40, tmp=2, packed_in=False)
    else:
        for i in range(40): a(f"v_add_f32 {v(F+i)}, {v(F+i)}, {v(L+i)}")
        for c in range(5):
            for j in range(4):
                a(f"v_cvt_pk_bf16_f32 {v(XD+4*c+j)}, {v(F+8*c+2*j)}, {v(F+8*c+2*j+1)}")
            a(f"buffer_store_dwordx4 {v(XD+4*c,4)}, v5, s[20:23], 0 offen offset:{256*c}")
    a.label(f"{U}_END")
    a("s_endpgm")
```

```python
import sys
from gen_common import *
from gen_k1 import gen_k1
from gen_k2 import gen_k2
from gen_k3 import gen_gemm160, gen_reduce

HEADER = open('sequential_preLN__compressed_kv_cla__dense_activation_gelu__prompt.s.ref').read().split('; Override')[0]

def build(kernels, path):
    a = Asm()
    launches = []
    kds = []
    for (fn, name, grid, block, lds, vg) in kernels:
        fn(a)
        a.lgkm = []; a.vm = []
        launches.append(f"; @launch kernel={name} grid=({grid},1,1) block=({block},1,1) lds={lds}")
        kds.append(kd(name, vg))
    errs = a.check_branches()
    assert errs == 0
    txt = HEADER + "\n".join(launches) + "\n" + '.amdgcn_target "amdgcn-amd-amdhsa--gfx950"\n.text\n' + a.text() + '.section .rodata,"a"\n' + "".join(kds)
    open(path, 'w').write(txt)

KS = [(gen_k1, "k1_kernel", 256, 512, 131072, 256),
      (gen_k2, "k2_kernel", 256, 512, 114688, 256),
      (lambda a: gen_gemm160(a, "k3_kernel", 'oproj'), "k3_kernel", 256, 256, 81920, 176),
      (lambda a: gen_reduce(a, "k4_kernel", 'ln2'), "k4_kernel", 256, 128, 0, 224),
      (lambda a: gen_gemm160(a, "k5_kernel", 'ffn1'), "k5_kernel", 176, 256, 81920, 176),
      (lambda a: gen_gemm160(a, "k6_kernel", 'ffn2'), "k6_kernel", 256, 256, 81920, 176),
      (lambda a: gen_reduce(a, "k7_kernel", 'fin'), "k7_kernel", 256, 128, 0, 224)]
if __name__ == '__main__':
    build(KS, sys.argv[1] if len(sys.argv) > 1 else 'out.s')
```

```python
from gen_common import *
import math, os
from gen_wp import emit_relayout_issue, emit_relayout_finish
FLAGS = os.environ.get('K2FLAGS', '')

KBASE = 0
VBASE = 49152
SCR = 114688
WRING = 98304

O_ = 192; QA = 160; QB = 128; S_ = [96, 112]; P_ = [80, 88]; POOL = 48; TMP = 32; NEGM = 16
vL16 = 1; vKa = 2; vVa = 3; vL = [6, 7]; vZb = 8; vZ = 9; vDma = 10; vT0 = 11; vT1 = 12; vT2 = 13; vSt = 14; vNeg = 15
vWa = [4, 5, 8, 9]; vWd = 10
LOOK = 4

def MF(d, a_, b_, c_):
    return f"v_mfma_f32_32x32x16_bf16 {d}, {a_}, {b_}, {c_}"

def gen_k2(a):
    STAMP = 'stamp' in FLAGS
    def stamp(i):
        if not STAMP: return
        a("s_memtime s[50:51]")
        a("s_waitcnt lgkmcnt(0)")
        a("v_mov_b32 v11, s50")
        a(f"s_add_u32 s52, s53, {i*4}")
        a("buffer_store_dword v11, off, s[56:59], s52")
        a.vm = []
    name = "k2_kernel"
    kernel_header(a, name)
    a("s_cmp_ge_u32 s2, 256")
    a("s_cbranch_scc1 K2_END")
    a("s_load_dwordx2 s[42:43], s[0:1], 16")
    a("s_load_dwordx2 s[44:45], s[0:1], 104")
    a("s_load_dwordx2 s[72:73], s[0:1], 40")
    a("s_load_dwordx2 s[74:75], s[0:1], 72")
    a("s_load_dwordx2 s[76:77], s[0:1], 56")
    a("v_lshrrev_b32 v1, 6, v0")
    a("v_and_b32 v0, 63, v0")
    a("v_readfirstlane_b32 s3, v1")
    a("s_lshr_b32 s4, s3, 2")
    a("s_and_b32 s5, s3, 3")
    a("s_and_b32 s6, s2, 7")
    a("s_lshl_b32 s6, s6, 2")
    a("s_lshr_b32 s7, s2, 3")
    a("s_and_b32 s46, s7, 3")
    a("s_add_u32 s6, s6, s46")
    a("s_lshr_b32 s7, s2, 5")
    a("s_lshl_b32 s40, s3, 11")
    CSC = math.log2(math.e)/math.sqrt(128.0)
    a(f"s_mov_b32 s36, {f32hex(CSC)}")
    a(f"s_mov_b32 s37, {f32hex(2.0**60)}")
    a("s_waitcnt lgkmcnt(0)")
    srd(a, 8, 44, 64*40*1024, add=WS_XN)
    srd(a, 12, 42, 640*4096*2)
    srd(a, 16, 44, 0x1000000, add=WS_KIMG)
    srd(a, 20, 44, 0x1000000, add=WS_VIMG)
    srd(a, 24, 44, 0x1000000, add=WS_CTX)
    if STAMP:
        a("s_load_dwordx2 s[54:55], s[0:1], 96")
        a("s_waitcnt lgkmcnt(0)")
        srd(a, 56, 54, 256)
        a("s_lshl_b32 s53, s3, 5")
        a("s_cmp_eq_u32 s2, 224")
        a("s_cselect_b32 s53, s53, 4096")
    stamp(0)
    a(f"v_lshlrev_b32 {v(vL16)}, 4, v0")
    a("s_sub_u32 s47, 15, s7")
    a("s_cmp_eq_u32 s4, 0")
    a("s_cselect_b32 s46, s47, s7")
    a("s_lshl_b32 s46, s46, 2")
    a("s_add_u32 s46, s46, s5")
    a("s_mul_i32 s46, s46, 40960")
    a("v_lshrrev_b32 v11, 4, v0")
    a("v_and_b32 v12, 15, v0")
    a("v_lshlrev_b32 v13, 2, v11")
    a("v_xor_b32 v12, v12, v13")
    a("v_lshlrev_b32 v12, 4, v12")
    a("s_lshl_b32 s47, s3, 3")
    a("v_add_u32 v11, s47, v11")
    a("v_lshlrev_b32 v11, 13, v11")
    a("s_lshl_b32 s47, s6, 8")
    a(f"v_add3_u32 {v(vWd)}, v11, v12, s47")
    a("v_and_b32 v11, 15, v0")
    a("v_lshrrev_b32 v12, 2, v11")
    a("v_and_b32 v13, 3, v11")
    a("v_lshrrev_b32 v14, 5, v0")
    a("v_lshlrev_b32 v14, 3, v14")
    a("v_add_u32 v14, v14, v12")
    a("v_lshlrev_b32 v14, 8, v14")
    a("v_lshrrev_b32 v15, 4, v0")
    a("v_and_b32 v15, 1, v15")
    a("v_lshlrev_b32 v15, 1, v15")
    a("v_and_b32 v11, 1, v13")
    a("v_add_u32 v15, v15, v11")
    a("v_lshlrev_b32 v12, 2, v12")
    a("v_xor_b32 v15, v15, v12")
    a("v_lshlrev_b32 v15, 4, v15")
    a("v_lshrrev_b32 v13, 1, v13")
    a("v_lshlrev_b32 v13, 3, v13")
    a(f"v_add3_u32 v14, v14, v15, v13")
    a(f"v_add_u32 {v(vWa[0])}, {WRING}, v14")
    for db in range(1, 4):
        a(f"v_xor_b32 {v(vWa[db])}, {db*64}, {v(vWa[0])}")
    ACC = O_
    XB = 96
    WF = [32, 48]
    NST = 10
    def wdma(st):
        out = []
        for i in range(2):
            out += [f"s_add_u32 m0, s40, {WRING + (st % 4)*16384 + i*1024}",
                    f"s_mov_b32 s47, {st*64*8192 + i*4*8192}",
                    f"buffer_load_dwordx4 {v(vWd)}, s[12:15], s47 offen lds"]
        return out
    def xload(ks):
        return [f"s_add_u32 s47, s46, {ks*1024}",
                f"buffer_load_dwordx4 {v(XB + 4*(ks % 8), 4)}, {v(vL16)}, s[8:11], s47 offen"]
    def wreads(ks, fs):
        st, ss = divmod(ks, 4)
        out = []
        for db in range(4):
            for u in range(2):
                out.append(f"ds_read_b64_tr_b16 {v(WF[fs]+4*db+2*u,2)}, {v(vWa[db])} offset:{(st % 4)*16384 + (16*ss+4*u)*256}")
        return out
    for st in range(3):
        for t in wdma(st): a(t)
    a.vm = []
    for ks in range(7):
        for t in xload(ks): a(t)
    order = ['d0']*2 + ['d1']*2 + ['d2']*2 + [f'x{k}' for k in range(7)]
    a("s_lshl_b32 s61, s2, 3")
    a("s_add_u32 s61, s61, s3")
    a("s_mul_i32 s62, s3, 5120")
    a(f"s_add_u32 s62, s62, {SCR}")
    for i in range(64): a(f"v_mov_b32 {v(ACC+i)}, 0")
    vKVd = 15
    a(f"v_add_u32 {v(vKVd)}, s40, {v(vL16)}")
    a("s_lshl_b32 s48, s6, 19")
    def dmaK(vd, wrap=True):
        o = [["s_add_u32 m0, s32, s40", "s_add_u32 s32, s32, 16384",
                f"buffer_load_dwordx4 {v(vd)}, s[16:19], s34 offen lds"],
                [f"buffer_load_dwordx4 {v(vd)}, s[16:19], s34 offen offset:1024 lds",
                "s_add_u32 s34, s34, 16384"],
                [f"s_cmp_eq_u32 s32, {KBASE+49152}",
                f"s_cselect_b32 s32, {KBASE}, s32"]]
        if wrap: o += [["s_cmp_eq_u32 s34, s63", "s_cselect_b32 s34, s48, s34"]]
        return o
    def dmaV(vd, wrap=True):
        o = [["s_add_u32 m0, s33, s40", "s_add_u32 s33, s33, 16384",
                f"buffer_load_dwordx4 {v(vd)}, s[20:23], s35 offen lds"],
                [f"buffer_load_dwordx4 {v(vd)}, s[20:23], s35 offen offset:1024 lds",
                "s_add_u32 s35, s35, 16384"],
                [f"s_cmp_eq_u32 s33, {VBASE+65536}",
                f"s_cselect_b32 s33, {VBASE}, s33"]]
        if wrap: o += [["s_cmp_eq_u32 s35, s63", "s_cselect_b32 s35, s48, s35"]]
        return o
    a(f"s_mov_b32 s32, {KBASE}")
    a(f"s_mov_b32 s33, {VBASE}")
    a("s_mov_b32 s34, s48")
    a("s_mov_b32 s35, s48")
    def wait_for(tag):
        idx = max(i for i, t in enumerate(order) if t == tag)
        n = len(order) - 1 - idx
        a(f"s_waitcnt vmcnt({n})")
    wait_for('d0')
    a("s_barrier")
    for t in wreads(0, 0): a(t)
    for st in range(NST):
        if st + 1 < NST:
            wait_for(f'd{st+1}')
            a("s_barrier")
        fill0 = []
        if st + 3 < NST:
            fill0 = wdma(st + 3)
        for ss in range(4):
            ks = st*4 + ss
            fs = ks % 2
            mm = [MF(v(ACC+16*db,16), v(WF[fs]+4*db,4), v(XB+4*(ks % 8),4), v(ACC+16*db,16)) for db in range(4)]
            wait_for(f'x{ks}')
            fill = []
            if ss == 0 and fill0:
                fill += fill0; order += [f'd{st+3}']*2
            if st == 7 and ss == 1:
                fill += [x for g_ in (dmaK(vKVd, False) + dmaK(vKVd, False) + dmaV(vKVd, False)) for x in g_]; order += ['kv']*6
            if ks + 1 < NST*4: fill += wreads(ks+1, 1-fs)
            if ks + 7 < NST*4:
                fill += xload(ks+7); order.append(f'x{ks+7}')
            a.vm = []
            interleave(a, mm, fill)
            a.vm = []
    stamp(1)
    a("s_barrier")
    for db in range(4):
        for r in range(16):
            a(f"v_mul_f32 {v(ACC+16*db+r)}, s36, {v(ACC+16*db+r)}")
    for db in range(4):
        for t in range(2):
            for j in range(4):
                r = ACC + 16*db + 8*t + 2*j
                a(f"v_cvt_pk_bf16_f32 {v(QA + 4*(2*db+t) + j)}, {v(r)}, {v(r+1)}")
    a("s_lshl_b32 s46, s3, 13")
    a(f"s_add_u32 s46, s46, {WRING}")
    a(f"v_add_u32 {v(vT0)}, s46, {v(vL16)}")
    for f in range(8):
        a(f"ds_write_b128 {v(vT0)}, {v(QA+4*f,4)} offset:{f*1024}")
    a("s_waitcnt lgkmcnt(0)")
    a("s_barrier")
    a("s_lshl_b32 s46, s5, 13")
    a(f"s_add_u32 s46, s46, {WRING}")
    a(f"v_add_u32 {v(vT0)}, s46, {v(vL16)}")
    for f in range(8):
        a(f"ds_read_b128 {v(QA+4*f,4)}, {v(vT0)} offset:{f*1024}")
        a(f"ds_read_b128 {v(QB+4*f,4)}, {v(vT0)} offset:{32768 + f*1024}")
    a(f"v_mov_b32 {v(vDma)}, {v(vKVd)}")
    a(f"v_lshrrev_b32 {v(vT2)}, 5, v0")
    a(f"v_and_b32 {v(vT1)}, 31, v0")
    a(f"v_lshlrev_b32 {v(vT2)}, 3, {v(vT2)}")
    a(f"v_sub_u32 {v(vT1)}, {v(vT1)}, {v(vT2)}")
    a("s_sub_u32 s46, s5, s4")
    a("s_lshl_b32 s46, s46, 5")
    a(f"v_add_u32 {v(vNeg)}, s46, {v(vT1)}")
    a("s_lshl_b32 s41, s4, 13")
    a(f"v_add_u32 {v(vSt)}, s41, {v(vL16)}")
    a("s_mov_b32 s39, 0")
    a("s_sub_u32 s38, 15, s7")
    a(f"s_mov_b32 s30, {KBASE}")
    a(f"s_mov_b32 s31, {VBASE}")
    a(f"v_mov_b32 {v(vT2)}, 0xff800000")
    a(f"v_mov_b32 {v(vT1)}, s37")
    a("s_waitcnt vmcnt(0) lgkmcnt(0)")
    a("s_barrier")
    a.vm = []
    if 'norl' not in FLAGS: emit_relayout_issue(a, 61, 62, 32, 64)
    a.vm = []
    stamp(2)
    a.label("K2_BLOCK")
    a("s_lshl_b32 s28, s38, 1")
    a("s_add_u32 s28, s28, 2")
    a("s_lshl_b32 s63, s28, 14")
    a("s_add_u32 s63, s63, s48")
    a("s_lshl_b32 s46, s38, 7")
    a(f"v_add_u32 {v(vZb)}, s46, {v(vNeg)}")
    for i in range(64): a(f"v_mov_b32 {v(O_+i)}, 0")
    for i in range(16): a(f"v_mov_b32 {v(NEGM+i)}, 0")
    a(f"v_mov_b32 {v(vL[0])}, 0")
    a(f"v_mov_b32 {v(vL[1])}, 0")
    a("s_mov_b32 s29, 0")
    def adv_k():
        return ["s_add_u32 s30, s30, 16384", f"s_cmp_eq_u32 s30, {KBASE+49152}", f"s_cselect_b32 s30, {KBASE}, s30"]
    def adv_v():
        return ["s_add_u32 s31, s31, 16384", f"s_cmp_eq_u32 s31, {VBASE+65536}", f"s_cselect_b32 s31, {VBASE}, s31"]

    slowsites = []
    def iteration(par, do_pv, do_qk, sm, masked, next_pv, pre, wait=4, dma=True, first=False):
        if wait is not None: a(f"s_waitcnt vmcnt({wait})")
        a("s_barrier")
        frags = []
        if do_pv:
            for t in range(2):
                for db in range(4):
                    frags.append(('V', db, t))
        if do_qk:
            for s_ in range(8): frags.append(('K', s_))
        nf = len(frags)
        def rd(k, nxt=False):
            f = ('V', k % 4, k // 4) if nxt else frags[k]
            buf = POOL + 4*(k % 8)
            if f[0] == 'V': return f"ds_read_b128 {v(buf,4)}, {v(vVa)} offset:{(f[1]*2+f[2])*1024}"
            return f"ds_read_b128 {v(buf,4)}, {v(vKa)} offset:{f[1]*1024}"
        def mf(k):
            f = frags[k]; buf = v(POOL + 4*(k % 8), 4)
            if f[0] == 'V':
                return MF(v(O_+16*f[1],16), buf, v(P_[1-par]+4*f[2],4), v(O_+16*f[1],16))
            sreg = v(S_[1-par],16)
            return MF(sreg, buf, v(QA+4*f[1],4), v(NEGM,16) if f[1] == 0 else sreg)
        head = []
        if do_qk:
            head.append(f"v_add_u32 {v(vKa)}, s30, {v(vSt)}")
            head += adv_k()
        for t in head: a(t)
        if not pre:
            for k in range(min(LOOK, nf)): a(rd(k))
        dm = (dmaK(vDma) + dmaV(vDma)) if dma else []
        val = []
        S = S_[par]; T = TMP; lo, ln = vL[1-par], vL[par]
        if sm:
            if masked:
                val.append(f"v_subrev_u32 {v(vZ)}, s29, {v(vZb)}")
                for r in range(16):
                    base = 16*(r//8) + (r % 8)
                    val.append(f"v_cmp_le_i32 vcc, {base}, {v(vZ)}")
                    val.append(f"v_cndmask_b32 {v(S+r)}, {v(vT2)}, {v(S+r)}, vcc")
            seq = []
            for r in range(16 + 2 if not first else 0):
                if r < 16: seq.append(f"v_exp_f32 {v(T+r)}, {v(S+r)}")
                if 0 <= r-2 < 16:
                    q = r-2
                    seq.append(f"v_add_f32 {v(ln)}, {v(lo if q == 0 else ln)}, {v(T+q)}")
                    if q % 2 == 1: seq.append(f"v_cvt_pk_bf16_f32 {v(P_[par]+q//2)}, {v(T+q-1)}, {v(T+q)}")
            val += seq
        fillers = [[] for _ in range(max(nf, 1))]
        for k in range(nf):
            kk = k + LOOK
            if kk < nf:
                fillers[k].append(rd(kk))
            elif next_pv:
                if kk == nf:
                    fillers[k].append(f"v_add_u32 {v(vVa)}, s31, {v(vSt)}")
                    fillers[k] += adv_v()
                fillers[k].append(rd(kk - nf, nxt=True))
        for i, t in enumerate(dm): fillers[min(i, nf-1)] += t
        nv = len(val)
        di = 0
        for k in range(nf):
            want = (nv * (k+1)) // nf
            fillers[k] += val[di:want]; di = want
        for k in range(nf):
            a(mf(k))
            for t in fillers[k]: a(t)
        a.vm = []
        if sm:
            a("s_add_u32 s29, s29, 64")
            lab = a.newlabel("K2_SLOW"); ret = a.newlabel("K2_RET")
            if first:
                a(f"s_branch {lab}")
            else:
                a(f"v_cmp_nle_f32 vcc, {v(ln)}, {v(vT1)}")
                a(f"s_cbranch_vccnz {lab}")
            a.label(ret)
            slowsites.append((lab, ret, par, a.snapshot(), do_qk, first))

    iteration(1, False, True, False, False, False, False, wait=None)
    iteration(0, False, True, True, True, True, False, wait=None, first=True)
    a("s_cmp_eq_u32 s28, 2")
    a("s_cbranch_scc1 K2_E")
    a("s_sub_u32 s49, s28, 4")
    a("s_lshr_b32 s49, s49, 1")
    snap = a.snapshot()
    a("s_cmp_eq_u32 s49, 0")
    a("s_cbranch_scc1 K2_C3")
    a.label("K2_LOOP")
    iteration(1, True, True, True, False, True, True)
    iteration(0, True, True, True, False, True, True)
    a("s_sub_u32 s49, s49, 1")
    a("s_cmp_lg_u32 s49, 0")
    a("s_cbranch_scc1 K2_LOOP")
    assert a.snapshot() == snap, (a.snapshot(), snap)
    a.label("K2_C3")
    iteration(1, True, True, True, False, True, True)
    iteration(0, True, True, True, True, True, True)
    assert a.snapshot() == snap
    a.label("K2_E")
    iteration(1, True, False, True, True, True, True, dma=False)
    a("s_cmp_lg_u32 s39, 0" if 'norl' not in FLAGS else "s_cmp_lg_u32 s39, 7")
    a("s_cbranch_scc1 K2_NORL")
    snapr = a.snapshot()
    a("s_waitcnt vmcnt(0)")
    sv = a.vm; a.vm = []
    emit_relayout_finish(a, 62, 100, 104, 64)
    a("s_waitcnt lgkmcnt(4)")
    a.vm = []
    a.lgkm = [set(x) for x in snapr[0]]
    a.label("K2_NORL")
    iteration(0, True, False, False, False, False, True, wait=None, dma=False)
    if STAMP:
        a("s_lshl_b32 s60, s39, 3")
        a("s_add_u32 s53, s53, s60")
    stamp(3)
    lf = vL[1]
    a(f"v_mov_b32 {v(vT0)}, {v(lf)}")
    a("s_nop 1")
    a(f"v_permlane32_swap_b32 {v(lf)}, {v(vT0)}")
    a(f"v_add_f32 {v(lf)}, {v(lf)}, {v(vT0)}")
    a("s_mul_i32 s46, s3, 4608")
    a(f"s_add_u32 s46, s46, {SCR}")
    a(f"v_add_u32 {v(vT0)}, s46, {v(vL16)}")
    a(f"v_lshrrev_b32 {v(vZ)}, 2, {v(vL16)}")
    a(f"v_add_u32 {v(vZ)}, s46, {v(vZ)}")
    a("s_xor_b32 s46, s3, 4")
    a("s_mul_i32 s46, s46, 4608")
    a(f"s_add_u32 s46, s46, {SCR}")
    vR0, vR1 = 96, 97
    a(f"v_add_u32 {v(vR0)}, s46, {v(vL16)}")
    a(f"v_lshrrev_b32 {v(vR1)}, 2, {v(vL16)}")
    a(f"v_add_u32 {v(vR1)}, s46, {v(vR1)}")
    R = 32
    mo, lo_ = 64, 65
    a(f"ds_write_b32 {v(vZ)}, {v(NEGM)} offset:4096")
    a(f"ds_write_b32 {v(vZ)}, {v(lf)} offset:4352")
    a("s_cmp_eq_u32 s4, 0")
    a("s_cbranch_scc0 K2_MRG1")
    snap2 = a.snapshot()
    for variant in range(2):
        if variant == 1:
            a.label("K2_MRG1"); a.restore(snap2)
        src = O_ + (32 if variant == 0 else 0)
        own = O_ + (0 if variant == 0 else 32)
        for rnd in range(2):
            for f in range(4):
                a(f"ds_write_b128 {v(vT0)}, {v(src+16*rnd+4*f,4)} offset:{f*1024}")
            a("s_waitcnt lgkmcnt(0)")
            a("s_barrier")
            if rnd == 0:
                a(f"ds_read_b32 {v(mo)}, {v(vR1)} offset:4096")
                a(f"ds_read_b32 {v(lo_)}, {v(vR1)} offset:4352")
            for f in range(4):
                a(f"ds_read_b128 {v(R+16*rnd+4*f,4)}, {v(vR0)} offset:{f*1024}")
            a("s_waitcnt lgkmcnt(0)")
            a("s_barrier")
        mt, ao, ap = 66, 67, 68
        a(f"v_min_f32 {v(mt)}, {v(NEGM)}, {v(mo)}")
        a(f"v_sub_f32 {v(ao)}, {v(mt)}, {v(NEGM)}")
        a(f"v_sub_f32 {v(ap)}, {v(mt)}, {v(mo)}")
        a(f"v_exp_f32 {v(ao)}, {v(ao)}")
        a(f"v_exp_f32 {v(ap)}, {v(ap)}")
        a(f"v_mul_f32 {v(lf)}, {v(lf)}, {v(ao)}")
        a(f"v_fmac_f32 {v(lf)}, {v(lo_)}, {v(ap)}")
        a(f"v_rcp_f32 {v(lf)}, {v(lf)}")
        a(f"v_mul_f32 {v(ao)}, {v(ao)}, {v(lf)}")
        a(f"v_mul_f32 {v(ap)}, {v(ap)}, {v(lf)}")
        a("s_lshl_b32 s46, s38, 2")
        a("s_add_u32 s46, s46, s5")
        a("s_lshl_b32 s46, s46, 18")
        a("s_lshl_b32 s47, s6, 13")
        a("s_add_u32 s46, s46, s47")
        a("s_lshl_b32 s47, s4, 12")
        a("s_add_u32 s46, s46, s47")
        for i in range(32):
            a(f"v_mul_f32 {v(own+i)}, {v(own+i)}, {v(ao)}")
            a(f"v_fmac_f32 {v(own+i)}, {v(R+i)}, {v(ap)}")
        for f in range(4):
            d = 100 + 4*f
            for j in range(4):
                a(f"v_cvt_pk_bf16_f32 {v(d+j)}, {v(own+8*f+2*j)}, {v(own+8*f+2*j+1)}")
            a(f"buffer_store_dwordx4 {v(d,4)}, {v(vL16)}, s[24:27], s46 offen offset:{f*1024}")
        a.vm = []
        if variant == 0: a("s_branch K2_FIN")
    a.label("K2_FIN")
    stamp(4)
    a("s_add_u32 s39, s39, 1")
    a("s_cmp_eq_u32 s39, 2")
    a("s_cbranch_scc1 K2_END")
    for i in range(32): a(f"v_mov_b32 {v(QA+i)}, {v(QB+i)}")
    a("s_mov_b32 s38, s7")
    a("s_waitcnt vmcnt(4)")
    a("s_branch K2_BLOCK")
    a.label("K2_END")
    a("s_endpgm")
    for (lab, ret, par, snap_, had_qk, first) in slowsites:
        a.label(lab); a.restore(snap_)
        S = S_[par]; T = TMP; lo, ln = vL[1-par], vL[par]
        x = vT0; y = vZ
        a(f"v_max3_f32 {v(x)}, {v(S)}, {v(S+1)}, {v(S+2)}")
        for r in range(3, 15, 2):
            a(f"v_max3_f32 {v(x)}, {v(x)}, {v(S+r)}, {v(S+r+1)}")
        if first:
            a(f"v_mov_b32 {v(y)}, {f32hex(-1e30)}")
            a(f"v_max3_f32 {v(x)}, {v(x)}, {v(S+15)}, {v(y)}")
        else:
            a(f"v_max3_f32 {v(x)}, {v(x)}, {v(S+15)}, 0")
        a(f"v_mov_b32 {v(y)}, {v(x)}")
        a("s_nop 1")
        a(f"v_permlane32_swap_b32 {v(x)}, {v(y)}")
        a(f"v_max_f32 {v(x)}, {v(x)}, {v(y)}")
        for i in range(16): a(f"v_sub_f32 {v(NEGM+i)}, {v(NEGM+i)}, {v(x)}")
        if first:
            a(f"v_mov_b32 {v(ln)}, 0")
        else:
            a(f"v_sub_f32 {v(y)}, 0, {v(x)}")
            a(f"v_exp_f32 {v(y)}, {v(y)}")
            for i in range(64): a(f"v_mul_f32 {v(O_+i)}, {v(O_+i)}, {v(y)}")
            a(f"v_mul_f32 {v(ln)}, {v(lo)}, {v(y)}")
        if had_qk:
            S2 = S_[1-par]
            for r in range(16): a(f"v_sub_f32 {v(S2+r)}, {v(S2+r)}, {v(x)}")
        for r in range(16): a(f"v_sub_f32 {v(T+r)}, {v(S+r)}, {v(x)}")
        for r in range(16): a(f"v_exp_f32 {v(T+r)}, {v(T+r)}")
        for r in range(16): a(f"v_add_f32 {v(ln)}, {v(ln)}, {v(T+r)}")
        for r in range(8): a(f"v_cvt_pk_bf16_f32 {v(P_[par]+r)}, {v(T+2*r)}, {v(T+2*r+1)}")
        a(f"s_branch {ret}")
```

```python
from gen_common import *
import math, os
WPF = os.environ.get('WPFLAGS', '')

WS_HF = WS_HN
WS_STAT = WS_H
WS_WFO = 0x3400000
WS_WF2 = 0x3A00000
WS_WF1 = 0x3E00000

def MF16(d, a_, b_, c_):
    return f"v_mfma_f32_16x16x32_bf16 {d}, {a_}, {b_}, {c_}"

def gen_wp(a, name, mode):
    cfg = dict(
        oproj=dict(xoff=WS_CTX, nks=256, woff=WS_WFO, wsteps=128, wn16=40, NT=5, NS=1, KS=4, NK=32, D=4),
        ffn1=dict(xoff=WS_HF, nks=40, woff=WS_WF1, wsteps=20, wn16=112, NT=7, NS=2, KS=2, NK=10, D=2),
        ffn2=dict(xoff=WS_H1, nks=108, woff=WS_WF2, wsteps=56, wn16=40, NT=5, NS=1, KS=4, NK=14, D=4))[mode]
    U = name.upper()
    STAMP = 'stamp' in WPF
    def stamp(i):
        if not STAMP: return
        a("s_memtime s[50:51]")
        a("s_waitcnt lgkmcnt(0)")
        a("v_mov_b32 v3, s50")
        a(f"s_add_u32 s52, s53, {i*4}")
        sv = list(a.vm)
        a("buffer_store_dword v3, off, s[56:59], s52")
        a.vm = sv + [set()]
    NT, NS, KS, NK, D, NKS, WST = cfg['NT'], cfg['NS'], cfg['KS'], cfg['NK'], cfg['D'], cfg['nks'], cfg['wsteps']
    TILE_N = NT*16*NS
    kernel_header(a, name)
    a("s_cmp_ge_u32 s2, 256")
    a(f"s_cbranch_scc1 {U}_END")
    a("s_load_dwordx2 s[6:7], s[0:1], 104")
    if mode == 'oproj': a("s_load_dwordx2 s[24:25], s[0:1], 0")
    if mode == 'ffn1': a("s_load_dwordx2 s[24:25], s[0:1], 64")
    if mode == 'ffn2':
        a("s_load_dwordx4 s[24:27], s[0:1], 80")
    a("v_lshrrev_b32 v1, 6, v0")
    a("v_mov_b32 v9, v0")
    a("v_and_b32 v0, 63, v0")
    a("v_readfirstlane_b32 s3, v1")
    a("s_and_b32 s30, s2, 7")
    a("s_lshl_b32 s30, s30, 2")
    a("s_lshr_b32 s31, s2, 3")
    a("s_and_b32 s33, s31, 3")
    a("s_add_u32 s30, s30, s33")
    a("s_lshr_b32 s31, s2, 5")
    if NS == 1:
        a("s_mov_b32 s32, s3")
        a("s_mov_b32 s33, 0")
    else:
        a("s_and_b32 s32, s3, 1")
        a("s_lshr_b32 s33, s3, 1")
    vX = 1; vL16 = 2
    a("v_lshrrev_b32 v2, 5, v0")
    a("v_lshlrev_b32 v2, 10, v2")
    a("v_lshrrev_b32 v3, 4, v0")
    a("v_and_b32 v3, 1, v3")
    a("v_lshl_add_u32 v2, v3, 9, v2")
    a("v_and_b32 v3, 15, v0")
    a(f"v_lshl_add_u32 {v(vX)}, v3, 4, v2")
    a(f"v_lshlrev_b32 {v(vL16)}, 4, v0")
    a(f"s_mul_i32 s36, s30, {2*NKS*1024}")
    a(f"s_mul_i32 s37, s32, {NK*2048}")
    a("s_add_u32 s36, s36, s37")
    a(f"s_add_u32 s35, s36, {NKS*1024}")
    a(f"s_mul_i32 s37, s31, {NS*NT*WST*1024}")
    a(f"s_mul_i32 s38, s33, {NT*WST*1024}")
    a("s_add_u32 s37, s37, s38")
    a(f"s_mul_i32 s38, s32, {NK*1024}")
    a("s_add_u32 s37, s37, s38")
    a("s_waitcnt lgkmcnt(0)")
    srd(a, 8, 6, 64*NKS*1024, add=cfg['xoff'])
    srd(a, 12, 6, cfg['wn16']*WST*1024, add=cfg['woff'])
    if STAMP:
        a("s_load_dwordx2 s[54:55], s[0:1], 96")
        a("s_waitcnt lgkmcnt(0)")
        srd(a, 56, 54, 256)
        a("s_lshl_b32 s53, s3, 5")
        a("s_cmp_eq_u32 s2, 100")
        a("s_cselect_b32 s53, s53, 4096")
    stamp(0)
    NACC = 4*NT*4
    ACC = 256 - NACC - (4*NT if mode == 'ffn1' else 0)
    CS = 256 - 4*NT
    SETSZ = 16 + 4*NT
    FB = 12
    ONE = FB + SETSZ*D
    assert ONE + 4 <= ACC, (ONE, ACC)
    def loads(s_):
        b = FB + SETSZ*(s_ % D)
        xl = [f"s_add_u32 s43, s36, {s_*2048}",
              f"s_add_u32 s44, s35, {s_*2048}",
              f"buffer_load_dwordx4 {v(b,4)}, {v(vX)}, s[8:11], s43 offen",
              f"buffer_load_dwordx4 {v(b+4,4)}, {v(vX)}, s[8:11], s43 offen offset:256",
              f"buffer_load_dwordx4 {v(b+8,4)}, {v(vX)}, s[8:11], s44 offen",
              f"buffer_load_dwordx4 {v(b+12,4)}, {v(vX)}, s[8:11], s44 offen offset:256"]
        wl = []
        for nt in range(NT):
            wl.append([f"s_add_u32 s45, s37, {(nt*WST + s_)*1024}",
                   f"buffer_load_dwordx4 {v(b+16+4*nt,4)}, {v(vL16)}, s[12:15], s45 offen"])
        return wl, xl
    NL = 4 + NT
    for s_ in range(min(D, NK)):
        wl, xl = loads(s_)
        for g in wl:
            for t in g: a(t)
        for t in xl: a(t)
    for i in range(ACC, 256): a(f"v_mov_b32 {v(i)}, 0")
    if mode == 'ffn1':
        for i in range(4): a(f"v_mov_b32 {v(ONE+i)}, 0x3f803f80")
    a.vm = []
    if STAMP:
        a("s_waitcnt vmcnt(0)")
        stamp(1)
        a("s_waitcnt vmcnt(0)")
        a.vm = []
    issued = min(D, NK)
    for s_ in range(NK):
        b = FB + SETSZ*(s_ % D)
        a(f"s_waitcnt vmcnt({min(63, (issued - 1 - s_)*NL)})")
        wl, xl = loads(s_ + D) if s_ + D < NK else ([[]]*NT, [])
        if s_ + D < NK: issued += 1
        a.vm = []
        for nt in range(NT):
            for qt in range(4):
                acc = v(ACC + (qt*NT+nt)*4, 4)
                a(MF16(acc, v(b+16+4*nt,4), v(b+4*qt,4), acc))
            if mode == 'ffn1':
                a(MF16(v(CS+4*nt,4), v(b+16+4*nt,4), v(ONE,4), v(CS+4*nt,4)))
            for t in wl[nt]: a(t)
        for t in xl: a(t)
        a.vm = []
    stamp(2)
    PER = TILE_N // 4
    NV = PER // 4
    a("v_lshrrev_b32 v4, 2, v9")
    a("v_and_b32 v5, 3, v9")
    a("s_lshl_b32 s40, s30, 6")
    a("v_add_u32 v10, s40, v4")
    a(f"s_mul_i32 s41, s31, {TILE_N}")
    a(f"v_mul_u32_u24 v11, {PER}, v5")
    a("v_add_u32 v11, s41, v11")
    def frag_addr(dst, nreg, nks, tmp):
        a(f"v_lshrrev_b32 {v(dst)}, 5, v10")
        a(f"v_mul_u32_u24 {v(dst)}, {nks}, {v(dst)}")
        a(f"v_lshrrev_b32 {v(tmp)}, 4, {v(nreg)}")
        a(f"v_add_u32 {v(dst)}, {v(dst)}, {v(tmp)}")
        a(f"v_lshlrev_b32 {v(dst)}, 10, {v(dst)}")
        a(f"v_and_b32 {v(tmp)}, 31, v10")
        a(f"v_lshl_add_u32 {v(dst)}, {v(tmp)}, 4, {v(dst)}")
        a(f"v_lshrrev_b32 {v(tmp)}, 3, {v(nreg)}")
        a(f"v_and_b32 {v(tmp)}, 1, {v(tmp)}")
        a(f"v_lshl_add_u32 {v(dst)}, {v(tmp)}, 9, {v(dst)}")
        a(f"v_and_b32 {v(tmp)}, 7, {v(nreg)}")
        a(f"v_lshl_add_u32 {v(dst)}, {v(tmp)}, 1, {v(dst)}")
    F = 12
    G = F + PER
    E = G + PER
    if mode in ('oproj', 'ffn2'):
        AD = E; X = E + 6; B2 = X + 10
        for i in range(5):
            a(f"v_add_u32 v6, {4*i}, v11")
            frag_addr(AD+i, 6, 40, 7)
        a(f"v_mul_u32_u24 {v(AD+5)}, 1280, v10")
        a(f"v_lshl_add_u32 {v(AD+5)}, v11, 1, {v(AD+5)}")
        srd(a, 16, 6, 64*40*1024, add=WS_HF)
        if mode == 'oproj':
            srd(a, 20, 24, 2048*640*2)
            srd(a, 44, 6, 8*2048*8, add=WS_STAT)
            for i in range(5): a(f"buffer_load_dwordx2 {v(X+2*i,2)}, {v(AD+5)}, s[20:23], 0 offen offset:{8*i}")
        else:
            srd(a, 20, 24, 640*2)
            srd(a, 44, 26, 2048*640*2)
            a("v_lshlrev_b32 v6, 1, v11")
            for i in range(5): a(f"buffer_load_dwordx2 {v(X+2*i,2)}, {v(AD+i)}, s[16:19], 0 offen")
            for i in range(5): a(f"buffer_load_dwordx2 {v(B2+2*i,2)}, v6, s[20:23], 0 offen offset:{8*i}")
    else:
        srd(a, 16, 6, 64*108*1024, add=WS_H1)
        srd(a, 20, 24, 1728*2)
        srd(a, 44, 6, 8*2048*8, add=WS_STAT)
    RP = NT*64 + 16
    WSZ = 64*RP + 512
    a("v_and_b32 v6, 15, v0")
    a(f"v_mul_u32_u24 v6, {RP}, v6")
    a("v_lshrrev_b32 v7, 4, v0")
    a("v_lshl_add_u32 v6, v7, 4, v6")
    a(f"s_mul_i32 s40, s3, {WSZ}")
    a("v_add_u32 v6, s40, v6")
    for qt in range(4):
        for nt in range(NT):
            a(f"ds_write_b128 v6, {v(ACC+(qt*NT+nt)*4,4)} offset:{qt*16*RP + nt*64}")
    if mode == 'ffn1':
        a("v_lshlrev_b32 v7, 4, v7")
        a("v_add_u32 v7, s40, v7")
        for nt in range(NT):
            a(f"ds_write_b128 v7, {v(CS+4*nt,4)} offset:{64*RP + nt*64}")
    a("s_waitcnt lgkmcnt(0)")
    if mode == 'ffn1':
        ST = 124; BI = ST + 16; CSR = BI + 28
        a("v_lshlrev_b32 v6, 3, v10")
        for k in range(8):
            a(f"s_mov_b32 s40, {k*2048*8}")
            a(f"buffer_load_dwordx2 {v(ST+2*k,2)}, v6, s[44:47], s40 offen")
        a("v_lshlrev_b32 v7, 1, v11")
        for i in range(7): a(f"buffer_load_dwordx4 {v(BI+4*i,4)}, v7, s[20:23], 0 offen offset:{16*i}")
    a("s_barrier")
    stamp(3)
    if NS == 1:
        a(f"v_mul_u32_u24 v6, {RP}, v4")
        a(f"v_mul_u32_u24 v7, {PER*4}, v5")
        a("v_add_u32 v6, v6, v7")
        srcs = [k*WSZ for k in range(KS)]
    else:
        a(f"v_mul_u32_u24 v6, {RP}, v4")
        a("v_lshrrev_b32 v7, 1, v5")
        a(f"v_mul_u32_u24 v7, {2*WSZ}, v7")
        a("v_add_u32 v6, v6, v7")
        a("v_and_b32 v8, 1, v5")
        a(f"v_mul_u32_u24 v8, {PER*4}, v8")
        a("v_add_u32 v6, v6, v8")
        a("v_add_u32 v8, v7, v8")
        srcs = [0, WSZ]
    for k, off in enumerate(srcs):
        dst = F if k == 0 else G
        base = "v6"
        if off + 16*NV > 65535:
            a(f"v_add_u32 v7, {off}, v6"); base = "v7"; off = 0
        for i in range(NV):
            a(f"ds_read_b128 {v(dst+4*i,4)}, {base} offset:{off + 16*i}")
        if k > 0:
            for i in range(PER): a(f"v_add_f32 {v(F+i)}, {v(F+i)}, {v(G+i)}")
    if mode == 'oproj':
        for i in range(10):
            a(f"v_lshlrev_b32 v6, 16, {v(X+i)}")
            a(f"v_add_f32 {v(F+2*i)}, {v(F+2*i)}, v6")
            a(f"v_and_b32 v7, 0xffff0000, {v(X+i)}")
            a(f"v_add_f32 {v(F+2*i+1)}, {v(F+2*i+1)}, v7")
        for i in range(10): a(f"v_cvt_pk_bf16_f32 {v(G+i)}, {v(F+2*i)}, {v(F+2*i+1)}")
        for i in range(5): a(f"buffer_store_dwordx2 {v(G+2*i,2)}, {v(AD+i)}, s[16:19], 0 offen")
        for i in range(10):
            a(f"v_lshlrev_b32 {v(F+2*i)}, 16, {v(G+i)}")
            a(f"v_and_b32 {v(F+2*i+1)}, 0xffff0000, {v(G+i)}")
        a(f"v_add_f32 v6, {v(F)}, {v(F+1)}")
        a(f"v_mul_f32 v7, {v(F)}, {v(F)}")
        for i in range(2, 20): a(f"v_add_f32 v6, v6, {v(F+i)}")
        for i in range(1, 20): a(f"v_fmac_f32 v7, {v(F+i)}, {v(F+i)}")
        for perm in ("[1,0,3,2]", "[2,3,0,1]"):
            a(f"v_add_f32_dpp v4, v6, v6 quad_perm:{perm} row_mask:0xf bank_mask:0xf")
            a(f"v_add_f32_dpp v5, v7, v7 quad_perm:{perm} row_mask:0xf bank_mask:0xf")
            a("v_mov_b32 v6, v4")
            a("v_mov_b32 v7, v5")
        a("s_lshl_b32 s40, s31, 11")
        a("v_add_u32 v4, s40, v10")
        a("v_lshlrev_b32 v4, 3, v4")
        a("buffer_store_dwordx2 v[6:7], v4, s[44:47], 0 offen")
    elif mode == 'ffn2':
        for src in (X, B2):
            for i in range(10):
                a(f"v_lshlrev_b32 v6, 16, {v(src+i)}")
                a(f"v_add_f32 {v(F+2*i)}, {v(F+2*i)}, v6")
                a(f"v_and_b32 v7, 0xffff0000, {v(src+i)}")
                a(f"v_add_f32 {v(F+2*i+1)}, {v(F+2*i+1)}, v7")
        for i in range(10): a(f"v_cvt_pk_bf16_f32 {v(G+i)}, {v(F+2*i)}, {v(F+2*i+1)}")
        for i in range(5): a(f"buffer_store_dwordx2 {v(G+2*i,2)}, {v(AD+5)}, s[44:47], 0 offen offset:{8*i}")
    else:
        for k in range(2):
            dst = CSR if k == 0 else G
            for i in range(NV):
                a(f"ds_read_b128 {v(dst+4*i,4)}, v8 offset:{k*WSZ + 64*RP + 16*i}")
        for i in range(PER): a(f"v_add_f32 {v(CSR+i)}, {v(CSR+i)}, {v(G+i)}")
        for k in range(1, 8):
            a(f"v_add_f32 {v(ST)}, {v(ST)}, {v(ST+2*k)}")
            a(f"v_add_f32 {v(ST+1)}, {v(ST+1)}, {v(ST+2*k+1)}")
        a(f"v_mul_f32 v4, {f32hex(1/640.0)}, {v(ST)}")
        a(f"v_mul_f32 v5, {f32hex(1/640.0)}, {v(ST+1)}")
        a("v_fma_f32 v5, -v4, v4, v5")
        a("v_max_f32 v5, 0, v5")
        a(f"v_add_f32 v5, {f32hex(1e-5)}, v5")
        a("v_rsq_f32 v5, v5")
        c1 = -2.0*math.sqrt(2.0/math.pi)*math.log2(math.e); c2 = c1*0.044715
        a(f"s_mov_b32 s40, {f32hex(c1)}")
        a(f"v_mov_b32 v3, {f32hex(c1)}")
        a(f"s_mov_b32 s41, {f32hex(c2)}")
        T = CSR + 56
        frag_addr(6, 11, 108, 7)
        a("v_lshrrev_b32 v7, 3, v11")
        a("v_and_b32 v7, 1, v7")
        for j in range(7):
            r = F + 8*j
            for e in range(8): a(f"v_fma_f32 {v(r+e)}, -v4, {v(CSR+8*j+e)}, {v(r+e)}")
            for e in range(4):
                a(f"v_lshlrev_b32 {v(T+2*e)}, 16, {v(BI+4*j+e)}")
                a(f"v_and_b32 {v(T+2*e+1)}, 0xffff0000, {v(BI+4*j+e)}")
            for e in range(8): a(f"v_fma_f32 {v(r+e)}, {v(r+e)}, v5, {v(T+e)}")
            for e in range(8): a(f"v_mul_f32 {v(T+e)}, {v(r+e)}, {v(r+e)}")
            for e in range(8): a(f"v_fma_f32 {v(T+e)}, {v(T+e)}, s41, v3")
            for e in range(8): a(f"v_mul_f32 {v(T+e)}, {v(T+e)}, {v(r+e)}")
            for e in range(8): a(f"v_exp_f32 {v(T+e)}, {v(T+e)}")
            for e in range(8): a(f"v_add_f32 {v(T+e)}, 1.0, {v(T+e)}")
            for e in range(8): a(f"v_rcp_f32 {v(T+e)}, {v(T+e)}")
            for e in range(8): a(f"v_mul_f32 {v(T+e)}, {v(T+e)}, {v(r+e)}")
            Dd = T + 8 + 4*(j % 2)
            for e in range(4): a(f"v_cvt_pk_bf16_f32 {v(Dd+e)}, {v(T+2*e)}, {v(T+2*e+1)}")
            a(f"v_add_u32 v7, {8*j}, v11")
            a("v_cmp_gt_u32 vcc, 1728, v7")
            a(f"v_add_u32 v8, {512*j}, v6")
            a("v_mov_b32 v7, 0x7ffffff0")
            a("v_cndmask_b32 v8, v7, v8, vcc")
            a(f"buffer_store_dwordx4 {v(Dd,4)}, v8, s[16:19], 0 offen")
    stamp(4)
    a("s_waitcnt vmcnt(0)")
    stamp(5)
    a.label(f"{U}_END")
    a("s_endpgm")

def emit_relayout_issue(a, sblk, lds_base_s, vtmp, sr):
    S = sr
    for k in range(6): a(f"s_mov_b32 {s(S+8+k)}, {s(80+k)}")
    L2, L1, LD = a.newlabel("RL2"), a.newlabel("RL1"), a.newlabel("RLD")
    a(f"s_cmp_ge_u32 {s(sblk)}, 1024")
    a(f"s_cbranch_scc1 {L2}")
    a(f"s_mov_b32 {s(S)}, {s(S+8)}"); a(f"s_mov_b32 {s(S+1)}, {s(S+9)}"); a(f"s_mov_b32 {s(S+2)}, {4096*640*2}")
    a(f"s_lshr_b32 {s(S+14)}, {s(sblk)}, 3")
    a(f"s_and_b32 {s(S+15)}, {s(sblk)}, 7")
    a(f"s_mov_b32 {s(S+8)}, 1280")
    a(f"s_mov_b32 {s(S+9)}, {WS_WFO}")
    a(f"s_mov_b32 {s(S+10)}, 128")
    a(f"s_branch {LD}")
    a.label(L2)
    a(f"s_cmp_ge_u32 {s(sblk)}, 1472")
    a(f"s_cbranch_scc1 {L1}")
    a(f"s_mov_b32 {s(S)}, {s(S+10)}"); a(f"s_mov_b32 {s(S+1)}, {s(S+11)}"); a(f"s_mov_b32 {s(S+2)}, {1728*640*2}")
    a(f"s_sub_u32 {s(S+15)}, {s(sblk)}, 1024")
    a(f"s_lshr_b32 {s(S+14)}, {s(S+15)}, 3")
    a(f"s_and_b32 {s(S+15)}, {s(S+15)}, 7")
    a(f"s_mov_b32 {s(S+8)}, 1280")
    a(f"s_mov_b32 {s(S+9)}, {WS_WF2}")
    a(f"s_mov_b32 {s(S+10)}, 56")
    a(f"s_branch {LD}")
    a.label(L1)
    a(f"s_mov_b32 {s(S)}, {s(S+12)}"); a(f"s_mov_b32 {s(S+1)}, {s(S+13)}"); a(f"s_mov_b32 {s(S+2)}, {640*1728*2}")
    a(f"s_sub_u32 {s(S+15)}, {s(sblk)}, 1472")
    a(f"s_min_u32 {s(S+15)}, {s(S+15)}, 439")
    a(f"s_mul_hi_u32 {s(S+14)}, {s(S+15)}, 0xccccccd")
    a(f"s_mul_i32 {s(S+8)}, {s(S+14)}, 20")
    a(f"s_sub_u32 {s(S+8)}, {s(S+15)}, {s(S+8)}")
    a(f"s_mov_b32 {s(S+15)}, {s(S+14)}")
    a(f"s_mov_b32 {s(S+14)}, {s(S+8)}")
    a(f"s_mov_b32 {s(S+8)}, 3456")
    a(f"s_mov_b32 {s(S+9)}, {WS_WF1}")
    a(f"s_mov_b32 {s(S+10)}, 20")
    a.label(LD)
    a(f"s_mov_b32 {s(S+3)}, 0x00020000")
    a(f"s_add_u32 {s(S+4)}, s44, {s(S+9)}")
    a(f"s_addc_u32 {s(S+5)}, s45, 0")
    a(f"s_mov_b32 {s(S+6)}, {0x600000}")
    a(f"s_mov_b32 {s(S+7)}, 0x00020000")
    a(f"s_mul_i32 {s(S+11)}, {s(S+14)}, {s(S+8)}")
    a(f"s_lshl_b32 {s(S+11)}, {s(S+11)}, 5")
    a(f"s_mul_i32 {s(S+12)}, {s(S+15)}, 160")
    a(f"s_add_u32 {s(S+11)}, {s(S+11)}, {s(S+12)}")
    a(f"s_mul_i32 {s(S+12)}, {s(S+15)}, {s(S+10)}")
    a(f"s_mul_i32 {s(S+12)}, {s(S+12)}, 5")
    a(f"s_add_u32 {s(S+12)}, {s(S+12)}, {s(S+14)}")
    a(f"s_lshl_b32 {s(S+12)}, {s(S+12)}, 10")
    a(f"s_lshl_b32 {s(S+10)}, {s(S+10)}, 10")
    a(f"s_mov_b32 {s(S+13)}, 0x1999999a")
    for i in range(5):
        a(f"v_add_u32 {v(vtmp)}, {64*i}, v0")
        a(f"v_mul_hi_u32 {v(vtmp+1)}, {v(vtmp)}, {s(S+13)}")
        a(f"v_mul_u32_u24 {v(vtmp+2)}, 10, {v(vtmp+1)}")
        a(f"v_sub_u32 {v(vtmp+2)}, {v(vtmp)}, {v(vtmp+2)}")
        a(f"v_mul_lo_u32 {v(vtmp+1)}, {v(vtmp+1)}, {s(S+8)}")
        a(f"v_lshl_add_u32 {v(vtmp+1)}, {v(vtmp+2)}, 4, {v(vtmp+1)}")
        a(f"s_add_u32 m0, {s(lds_base_s)}, {i*1024}")
        a(f"buffer_load_dwordx4 {v(vtmp+1)}, {s(S,4)}, {s(S+11)} offen lds")

def emit_relayout_finish(a, lds_base_s, vtmp, vdat, sr):
    S = sr
    a(f"v_lshrrev_b32 {v(vtmp)}, 4, v0")
    a(f"v_and_b32 {v(vtmp+1)}, 15, v0")
    a(f"v_lshrrev_b32 {v(vtmp+2)}, 2, {v(vtmp+1)}")
    a(f"v_lshl_add_u32 {v(vtmp)}, {v(vtmp)}, 3, {v(vtmp+2)}")
    a(f"v_mul_u32_u24 {v(vtmp)}, 160, {v(vtmp)}")
    a(f"v_and_b32 {v(vtmp+1)}, 3, {v(vtmp+1)}")
    a(f"v_lshl_add_u32 {v(vtmp)}, {v(vtmp+1)}, 3, {v(vtmp)}")
    a(f"v_add_u32 {v(vtmp)}, {s(lds_base_s)}, {v(vtmp)}")
    a(f"v_lshlrev_b32 {v(vtmp+1)}, 4, v0")
    for nt in range(5):
        for u in range(2):
            a(f"ds_read_b64_tr_b16 {v(vdat+4*nt+2*u,2)}, {v(vtmp)} offset:{4*u*160 + nt*32}")
    for nt in range(5):
        a(f"buffer_store_dwordx4 {v(vdat+4*nt,4)}, {v(vtmp+1)}, {s(S+4,4)}, {s(S+12)} offen")
        if nt < 4: a(f"s_add_u32 {s(S+12)}, {s(S+12)}, {s(S+10)}")
```

```python
import sys
from gen_common import *
from gen_k1 import gen_k1
from gen_k2 import gen_k2
from gen_k3 import gen_gemm160, gen_reduce
from gen_wp import gen_wp

HEADER = open('sequential_preLN__compressed_kv_cla__dense_activation_gelu__prompt.s.ref').read().split('; Override')[0]

def build(kernels, path):
    a = Asm()
    launches = []
    kds = []
    for (fn, name, grid, block, lds, vg) in kernels:
        fn(a)
        a.lgkm = []; a.vm = []
        launches.append(f"; @launch kernel={name} grid=({grid},1,1) block=({block},1,1) lds={lds}")
        kds.append(kd(name, vg))
    errs = a.check_branches()
    assert errs == 0
    txt = HEADER + "\n".join(launches) + "\n" + '.amdgcn_target "amdgcn-amd-amdhsa--gfx950"\n.text\n' + a.text() + '.section .rodata,"a"\n' + "".join(kds)
    open(path, 'w').write(txt)

KS = [(gen_k1, "k1_kernel", 256, 512, 131072, 256),
      (gen_k2, "k2_kernel", 256, 512, 163840, 256),
      (lambda a: gen_wp(a, "k3_kernel", 'oproj'), "k3_kernel", 256, 256, 90112, 256),
      (lambda a: gen_wp(a, "k5_kernel", 'ffn1'), "k5_kernel", 256, 256, 121856, 256),
      (lambda a: gen_wp(a, "k6_kernel", 'ffn2'), "k6_kernel", 256, 256, 90112, 256)]
if __name__ == '__main__':
    build(KS, sys.argv[1] if len(sys.argv) > 1 else 'out.s')
```

```python
from gen_common import *

import os
FLAGS=os.environ.get('K1FLAGS','')
def gen_k1(a):
    name = "k1_kernel"
    kernel_header(a, name)
    a("s_cmp_ge_u32 s2, 256")
    a("s_cbranch_scc1 K1_END")
    a("s_load_dwordx2 s[4:5], s[0:1], 8")
    a("s_load_dwordx4 s[8:11], s[0:1], 24")
    a("s_load_dwordx2 s[6:7], s[0:1], 0")
    a("s_load_dwordx2 s[12:13], s[0:1], 104")
    a("v_lshrrev_b32 v1, 6, v0")
    a("v_and_b32 v0, 63, v0")
    a("v_readfirstlane_b32 s3, v1")
    a("s_and_b32 s36, s2, 7")
    a("s_lshr_b32 s37, s2, 3")
    a("s_and_b32 s37, s37, 3")
    a("s_lshl_b32 s37, s37, 3")
    a("s_add_u32 s36, s36, s37")
    a("s_lshr_b32 s37, s2, 5")
    a("s_lshr_b32 s38, s36, 4")
    a("s_and_b32 s43, s36, 15")
    a("s_lshr_b32 s39, s3, 2")
    a("s_and_b32 s40, s3, 3")
    a("s_lshl_b32 s41, s3, 11")
    a("s_waitcnt lgkmcnt(0)")
    srd(a, 16, 4, 2048*512*2)
    a("s_cmp_eq_u32 s38, 0")
    a("s_cselect_b32 s20, s8, s10")
    a("s_cselect_b32 s21, s9, s11")
    a("s_mov_b32 s22, %d" % (512*4096*2))
    a("s_mov_b32 s23, 0x00020000")
    a("s_mov_b32 s44, %d" % WS_KIMG)
    a("s_mov_b32 s45, %d" % WS_VIMG)
    a("s_cselect_b32 s44, s44, s45")
    a("s_add_u32 s24, s12, s44")
    a("s_addc_u32 s25, s13, 0")
    a("s_mov_b32 s26, 0x1000000")
    a("s_mov_b32 s27, 0x00020000")
    srd(a, 28, 6, 2048*640*2)
    srd(a, 32, 12, 64*40*1024, add=WS_XN)

    LN = 40
    vLNoff = 38
    a("v_lshrrev_b32 v2, 4, v0")
    a("v_and_b32 v3, 15, v0")
    a("s_lshl_b32 s45, s2, 3")
    a("s_lshl_b32 s46, s3, 2")
    a("s_add_u32 s45, s45, s46")
    a("v_add_u32 v37, s45, v2")
    a("s_movk_i32 s46, 1280")
    a("v_mul_lo_u32 v38, v37, s46")
    a("v_lshlrev_b32 v4, 4, v3")
    a("v_add_u32 v38, v38, v4")
    a("s_cmp_ge_u32 s3, 2")
    a("s_cbranch_scc1 K1_NOLN")
    for c in range(5):
        a(f"buffer_load_dwordx4 {v(LN+4*c,4)}, v38, s[28:31], 0 offen offset:{256*c}")
    a.label("K1_NOLN")
    a.vm = []

    vXd, vWd0, vWd1 = 5, 6, 7
    vXa0, vXa1, vWa0, vWa1 = 8, 9, 10, 11
    vSt = 12
    XBASE, WBASE = 0, 65536
    a("v_lshrrev_b32 v2, 2, v0")
    a("s_lshl_b32 s45, s37, 8")
    a("s_lshl_b32 s46, s3, 5")
    a("s_add_u32 s45, s45, s46")
    a("v_add_u32 v2, s45, v2")
    a("v_lshlrev_b32 v2, 10, v2")
    a("v_and_b32 v3, 3, v0")
    a("v_lshrrev_b32 v4, 4, v0")
    a("v_xor_b32 v3, v3, v4")
    a("v_lshlrev_b32 v3, 4, v3")
    a(f"v_add_u32 {v(vXd)}, v2, v3")
    a("v_lshrrev_b32 v2, 5, v0")
    a("v_and_b32 v3, 31, v0")
    a("s_lshl_b32 s45, s3, 2")
    a("s_lshl_b32 s46, s43, 9")
    for i, dst in ((0, vWd0), (1, vWd1)):
        a(f"v_add_u32 v4, {2*i}, v2")
        a("v_add_u32 v13, s45, v4")
        a("v_lshlrev_b32 v13, 13, v13")
        a("v_lshlrev_b32 v4, 2, v4")
        a("v_xor_b32 v4, v4, v3")
        a("v_lshlrev_b32 v4, 4, v4")
        a("v_add_u32 v13, v13, v4")
        a(f"v_add_u32 {v(dst)}, s46, v13")
    a("v_and_b32 v2, 31, v0")
    swap23_v(a, 3, 2, 4)
    a("v_lshrrev_b32 v4, 2, v3")
    a("v_and_b32 v4, 3, v4")
    a("v_lshrrev_b32 v13, 5, v0")
    a("v_xor_b32 v4, v4, v13")
    a("v_lshlrev_b32 v4, 4, v4")
    a("v_lshlrev_b32 v3, 6, v3")
    a("v_add_u32 v3, v3, v4")
    a("s_lshl_b32 s45, s39, 13")
    a(f"v_add_u32 {v(vXa0)}, s45, v3")
    a(f"v_xor_b32 {v(vXa1)}, 32, {v(vXa0)}")
    a("v_and_b32 v2, 15, v0")
    a("v_lshrrev_b32 v3, 2, v2")
    a("v_and_b32 v4, 3, v2")
    a("v_lshrrev_b32 v13, 5, v0")
    a("v_lshlrev_b32 v13, 3, v13")
    a("v_add_u32 v13, v13, v3")
    a("v_lshlrev_b32 v13, 9, v13")
    a("v_lshrrev_b32 v14, 4, v0")
    a("v_and_b32 v14, 1, v14")
    a("v_lshlrev_b32 v14, 1, v14")
    a("v_and_b32 v15, 1, v4")
    a("v_add_u32 v14, v14, v15")
    a("s_lshl_b32 s45, s40, 3")
    a("v_add_u32 v14, s45, v14")
    a("v_lshlrev_b32 v3, 2, v3")
    a("v_xor_b32 v14, v14, v3")
    a("v_lshlrev_b32 v14, 4, v14")
    a("v_lshrrev_b32 v4, 1, v4")
    a("v_lshlrev_b32 v4, 3, v4")
    a("v_add3_u32 v13, v13, v14, v4")
    a(f"v_add_u32 {v(vWa0)}, {WBASE}, v13")
    a(f"v_xor_b32 {v(vWa1)}, 64, {v(vWa0)}")
    a(f"v_lshlrev_b32 {v(vSt)}, 4, v0")
    ACC = 128
    for i in range(128):
        a(f"v_mov_b32 {v(ACC+i)}, 0")
    XF = [64, 80]
    WF = [96, 104]

    def dma(it):
        st = it % 4
        out = []
        for i in range(0 if ('wonly' in FLAGS or 'nodma' in FLAGS) else 2):
            out.append([f"s_add_u32 m0, s41, {XBASE + st*16384 + i*1024}",
                        f"s_mov_b32 s47, {it*64 + i*16384}",
                        f"buffer_load_dwordx4 {v(vXd)}, s[16:19], s47 offen lds"])
        for i in range(0 if ('xonly' in FLAGS or 'nodma' in FLAGS) else 2):
            out.append([f"s_add_u32 m0, s41, {WBASE + st*16384 + i*1024}",
                        f"s_mov_b32 s47, {it*32*8192}",
                        f"buffer_load_dwordx4 {v(vWd0 if i == 0 else vWd1)}, s[20:23], s47 offen lds"])
        return out
    def reads(it, sstep, fs):
        st = it % 4
        out = []
        for nb in range(2):
            for u in range(2):
                out.append(f"ds_read_b64_tr_b16 {v(WF[fs]+4*nb+2*u,2)}, {v(vWa0 if nb == 0 else vWa1)} offset:{st*16384 + (16*sstep+4*u)*512}")
        for kb in range(4):
            out.append(f"ds_read_b128 {v(XF[fs]+4*kb,4)}, {v(vXa0 if sstep == 0 else vXa1)} offset:{st*16384 + kb*2048}")
        return out
    def mfmas(fs, vtype):
        out = []
        for kb in range(4):
            for nb in range(2):
                acc = v(ACC + (kb*2+nb)*16, 16)
                w = v(WF[fs]+4*nb, 4); x = v(XF[fs]+4*kb, 4)
                if 'm16' in FLAGS:
                    for hh in range(2):
                        a4 = v(ACC + (kb*2+nb)*16 + 4*hh + 8*fs, 4)
                        out.append(f"v_mfma_f32_16x16x32_bf16 {a4}, {w}, {x}, {a4}")
                elif vtype == 0: out.append(f"v_mfma_f32_32x32x16_bf16 {acc}, {w}, {x}, {acc}")
                else:          out.append(f"v_mfma_f32_32x32x16_bf16 {acc}, {x}, {w}, {acc}")
        return out

    NIT = 16
    for it in range(3):
        for grp in dma(it):
            for t in grp: a(t)
    a.vm = []
    PER = 2 if 'only' in FLAGS else 4
    a(f"s_waitcnt vmcnt({2*PER})")
    a("s_barrier")
    for t in reads(0, 0, 0): a(t)
    a("s_cmp_eq_u32 s38, 0")
    a("s_cbranch_scc0 K1_VTYPE")
    snap = a.snapshot()
    for vtype in range(2):
        if vtype == 1:
            a.label("K1_VTYPE"); a.restore(snap)
        for it in range(NIT):
            if it <= NIT-3: a(f"s_waitcnt vmcnt({PER})")
            elif it == NIT-2: a("s_waitcnt vmcnt(0)")
            if it <= NIT-2: a("s_barrier")
            fill = []
            if it + 3 < NIT:
                for grp in dma(it+3): fill += grp
            a.vm = []
            r1 = reads(it, 1, 1)
            mm0 = mfmas(0, vtype); mm1 = mfmas(1, vtype)
            if 'nomfma' in FLAGS: mm0 = mm0[:1]; mm1 = mm1[:1]
            if 'nolds' in FLAGS: r1 = []
            interleave(a, mm0, r1 + fill, lead=2)
            r0 = reads(it+1, 0, 0) if it + 1 < NIT else []
            if 'nolds' in FLAGS: r0 = []
            interleave(a, mm1, r0, lead=0)
            a.vm = []
        a("s_lshl_b32 s45, s43, 1")
        a("s_lshr_b32 s46, s40, 1")
        a("s_add_u32 s45, s45, s46")
        a("s_lshl_b32 s45, s45, 19")
        a("s_lshl_b32 s46, s37, 3")
        a("s_lshl_b32 s47, s39, 2")
        a("s_add_u32 s46, s46, s47")
        a("s_lshl_b32 s46, s46, 13")
        a("s_add_u32 s45, s45, s46")
        a("s_and_b32 s46, s40, 1")
        a("s_lshl_b32 s46, s46, 12")
        a("s_add_u32 s45, s45, s46")
        T = 64
        cnt = 0
        for kb in range(4):
            a(f"s_add_u32 s46, s45, {kb*8192}")
            for nb in range(2):
                for t in range(2):
                    r = ACC + (kb*2+nb)*16 + 8*t
                    d = T + 4*(cnt % 8); cnt += 1
                    for j in range(4):
                        a(f"v_cvt_pk_bf16_f32 {v(d+j)}, {v(r+2*j)}, {v(r+2*j+1)}")
                    if 'nostore' not in FLAGS or (kb==0 and nb==0 and t==0): a(f"buffer_store_dwordx4 {v(d,4)}, {v(vSt)}, s[24:27], s46 offen offset:{(2*nb+t)*1024}" + (" nt" if 'nt' in FLAGS.split(',') else "") + (" sc1" if 'sc1' in FLAGS.split(',') else "") + (" sc0" if 'sc0' in FLAGS.split(',') else ""))
        a.vm = []
        if vtype == 0: a("s_branch K1_LN")
    a.label("K1_LN")
    a("s_cmp_ge_u32 s3, 2")
    a("s_cbranch_scc1 K1_END")
    a("s_waitcnt vmcnt(16)")
    emit_ln(a, data=LN, f32=64, n8=5, srd_out=32, rowreg=37, lane=0, frag_ks_stride=40, tmp=2)
    a.label("K1_END")
    a("s_endpgm")

def dpp_allreduce16(a, r, t):
    for sh in (8, 4, 2, 1):
        a(f"v_add_f32_dpp {v(t)}, {v(r)}, {v(r)} row_ror:{sh} row_mask:0xf bank_mask:0xf")
        a(f"v_mov_b32 {v(r)}, {v(t)}")

def emit_ln(a, data, f32, n8, srd_out, rowreg, lane, frag_ks_stride, tmp, packed_in=True):
    N = 8*n8
    if packed_in:
        for i in range(4*n8):
            a(f"v_lshlrev_b32 {v(f32+2*i)}, 16, {v(data+i)}")
            a(f"v_and_b32 {v(f32+2*i+1)}, 0xffff0000, {v(data+i)}")
    S, T1 = tmp, tmp+1
    a(f"v_add_f32 {v(S)}, {v(f32)}, {v(f32+1)}")
    for i in range(2, N):
        a(f"v_add_f32 {v(S)}, {v(S)}, {v(f32+i)}")
    dpp_allreduce16(a, S, T1)
    a(f"v_mul_f32 {v(S)}, {f32hex(1.0/640.0)}, {v(S)}")
    for i in range(N):
        a(f"v_sub_f32 {v(f32+i)}, {v(f32+i)}, {v(S)}")
    a(f"v_mul_f32 {v(S)}, {v(f32)}, {v(f32)}")
    for i in range(1, N):
        a(f"v_fmac_f32 {v(S)}, {v(f32+i)}, {v(f32+i)}")
    dpp_allreduce16(a, S, T1)
    a(f"v_mov_b32 {v(T1)}, {f32hex(1e-5)}")
    a(f"v_fmac_f32 {v(T1)}, {f32hex(1.0/640.0)}, {v(S)}")
    a(f"v_rsq_f32 {v(S)}, {v(T1)}")
    for i in range(N):
        a(f"v_mul_f32 {v(f32+i)}, {v(f32+i)}, {v(S)}")
    A, B = tmp, tmp+1
    a(f"v_lshrrev_b32 {v(A)}, 5, {v(rowreg)}")
    a(f"s_mov_b32 s46, {frag_ks_stride*1024}")
    a(f"v_mul_lo_u32 {v(A)}, {v(A)}, s46")
    a(f"v_and_b32 {v(B)}, 31, {v(rowreg)}")
    a(f"v_lshl_add_u32 {v(A)}, {v(B)}, 4, {v(A)}")
    a(f"v_and_b32 {v(B)}, 15, {v(lane)}")
    a(f"v_lshrrev_b32 {v(B)}, 1, {v(B)}")
    a(f"v_lshl_add_u32 {v(A)}, {v(B)}, 10, {v(A)}")
    a(f"v_and_b32 {v(B)}, 1, {v(lane)}")
    a(f"v_lshl_add_u32 {v(A)}, {v(B)}, 9, {v(A)}")
    for c in range(n8):
        for j in range(4):
            a(f"v_cvt_pk_bf16_f32 {v(data+4*c+j)}, {v(f32+8*c+2*j)}, {v(f32+8*c+2*j+1)}")
        a(f"s_mov_b32 s46, {c*8192}")
        a(f"buffer_store_dwordx4 {v(data+4*c,4)}, {v(A)}, {s(srd_out,4)}, s46 offen")
```

```python
from gen_common import *
from gen_k1 import emit_ln
import os
FLAGS = os.environ.get('K1FLAGS', '')
def MF16(d, a_, b_, c_):
    return f"v_mfma_f32_16x16x32_bf16 {d}, {a_}, {b_}, {c_}"

def gen_k1b(a):
    name = "k1_kernel"
    kernel_header(a, name)
    a("s_cmp_ge_u32 s2, 256")
    a("s_cbranch_scc1 K1_END")
    a("s_load_dwordx2 s[4:5], s[0:1], 8")
    a("s_load_dwordx4 s[8:11], s[0:1], 24")
    a("s_load_dwordx2 s[6:7], s[0:1], 0")
    a("s_load_dwordx2 s[12:13], s[0:1], 104")
    a("v_lshrrev_b32 v1, 6, v0")
    a("v_and_b32 v0, 63, v0")
    a("v_readfirstlane_b32 s3, v1")
    a("s_and_b32 s36, s2, 7")
    a("s_lshr_b32 s37, s2, 3")
    a("s_and_b32 s37, s37, 3")
    a("s_lshl_b32 s37, s37, 3")
    a("s_add_u32 s36, s36, s37")
    a("s_lshr_b32 s37, s2, 5")
    a("s_lshr_b32 s38, s36, 4")
    a("s_and_b32 s43, s36, 15")
    a("s_lshr_b32 s39, s3, 1")
    a("s_and_b32 s40, s3, 1")
    a("s_waitcnt lgkmcnt(0)")
    srd(a, 16, 4, 2048*512*2)
    a("s_cmp_eq_u32 s38, 0")
    a("s_cselect_b32 s20, s8, s10")
    a("s_cselect_b32 s21, s9, s11")
    a("s_mov_b32 s22, %d" % (512*4096*2))
    a("s_mov_b32 s23, 0x00020000")
    a("s_mov_b32 s44, %d" % WS_KIMG)
    a("s_mov_b32 s45, %d" % WS_VIMG)
    a("s_cselect_b32 s44, s44, s45")
    a("s_add_u32 s24, s12, s44")
    a("s_addc_u32 s25, s13, 0")
    a("s_mov_b32 s26, 0x1000000")
    a("s_mov_b32 s27, 0x00020000")
    srd(a, 28, 6, 2048*640*2)
    srd(a, 32, 12, 64*40*1024, add=WS_XN)
    STG = 24576; XSZ = 16384; NR = 6
    vXd, vWd, vXa, vWa, vSt = 5, 6, [7, 8], [9, 10], 11
    a("v_lshrrev_b32 v2, 2, v0")
    a("s_lshl_b32 s45, s37, 8")
    a("s_lshl_b32 s46, s3, 5")
    a("s_add_u32 s45, s45, s46")
    a("v_add_u32 v2, s45, v2")
    a("v_lshlrev_b32 v2, 10, v2")
    a("v_lshrrev_b32 v4, 4, v0")
    a("v_sub_u32 v4, 0, v4")
    a("v_and_b32 v4, 3, v4")
    a("v_and_b32 v3, 3, v0")
    a("v_xor_b32 v3, v3, v4")
    a(f"v_lshl_add_u32 {v(vXd)}, v3, 4, v2")
    a("v_lshrrev_b32 v2, 4, v0")
    a("s_lshr_b32 s45, s3, 1")
    a("s_and_b32 s45, s45, 1")
    a("s_lshl_b32 s45, s45, 2")
    a("v_or_b32 v3, s45, v2")
    a("v_lshlrev_b32 v3, 1, v3")
    a("v_and_b32 v4, 15, v0")
    a("v_xor_b32 v3, v3, v4")
    a("s_lshl_b32 s45, s3, 2")
    a("v_add_u32 v2, s45, v2")
    a("v_lshlrev_b32 v2, 13, v2")
    a("s_lshl_b32 s46, s43, 9")
    a("v_lshl_add_u32 v2, v3, 4, v2")
    a(f"v_add_u32 {v(vWd)}, s46, v2")
    a("s_lshl_b32 s41, s3, 11")
    a("s_lshl_b32 s42, s3, 10")
    for st in range(4):
        pass
    LN = 40
    a("v_lshrrev_b32 v2, 4, v0")
    a("v_and_b32 v3, 15, v0")
    a("s_lshl_b32 s45, s2, 3")
    a("s_lshl_b32 s46, s3, 2")
    a("s_add_u32 s45, s45, s46")
    a("v_add_u32 v37, s45, v2")
    a("s_movk_i32 s46, 1280")
    a("v_mul_lo_u32 v38, v37, s46")
    a("v_lshlrev_b32 v4, 4, v3")
    a("v_add_u32 v38, v38, v4")
    a("v_and_b32 v12, 15, v0")
    a("v_lshrrev_b32 v13, 4, v0")
    a("v_lshrrev_b32 v14, 2, v12")
    a("v_and_b32 v15, 3, v12")
    a("v_and_b32 v16, 1, v14")
    a("v_lshlrev_b32 v16, 1, v16")
    a("v_lshrrev_b32 v17, 1, v14")
    a("v_or_b32 v16, v16, v17")
    a("v_lshl_add_u32 v17, v16, 2, v15")
    a("v_lshl_add_u32 v18, v14, 3, v15")
    a("s_lshl_b32 s45, s39, 12")
    def xaddr(dst, rowreg, extra):
        a(f"v_add_u32 v19, {extra}, {v(rowreg)}")
        a("v_lshrrev_b32 v20, 2, v19")
        a("v_sub_u32 v20, 0, v20")
        a("v_and_b32 v20, 3, v20")
        a("v_xor_b32 v20, v20, v13")
        a("v_lshlrev_b32 v19, 6, v19")
        a("v_lshl_add_u32 v19, v20, 4, v19")
        a(f"v_add_u32 {v(dst)}, s45, v19")
    def waddr(dst, colbytes_reg):
        a("v_and_b32 v19, 1, v13")
        a("v_lshl_add_u32 v19, v19, 2, v14")
        a("v_lshlrev_b32 v19, 5, v19")
        a(f"v_xor_b32 v19, v19, {v(colbytes_reg)}")
        a("v_lshl_add_u32 v20, v13, 3, v14")
        a("v_lshl_add_u32 v19, v20, 8, v19")
        a(f"v_add_u32 {v(dst)}, {XSZ}, v19")
    a("s_lshl_b32 s46, s40, 7")
    a("s_cmp_eq_u32 s38, 0")
    a("s_cbranch_scc0 K1_ADDRV")
    xaddr(vXa[0], 17, 0)
    a(f"v_mov_b32 {v(vXa[1])}, {v(vXa[0])}")
    for u in range(2):
        a(f"v_lshlrev_b32 v21, 4, v15")
        a(f"v_add_u32 v21, {8*u}, v21")
        a("v_add_u32 v21, s46, v21")
        waddr(vWa[u], 21)
    a("s_branch K1_ADDRD")
    a.label("K1_ADDRV")
    xaddr(vXa[0], 18, 0)
    xaddr(vXa[1], 18, 4)
    a("v_and_b32 v21, 1, v15")
    a("v_lshlrev_b32 v21, 1, v21")
    a("v_lshrrev_b32 v22, 1, v15")
    a("v_or_b32 v21, v21, v22")
    a("v_lshlrev_b32 v21, 3, v21")
    a("v_add_u32 v21, s46, v21")
    waddr(vWa[0], 21)
    a("v_add_u32 v21, 32, v21")
    waddr(vWa[1], 21)
    a.label("K1_ADDRD")
    a("v_lshrrev_b32 v19, 1, v13")
    a("v_lshlrev_b32 v19, 10, v19")
    a("v_and_b32 v20, 1, v13")
    a("v_lshl_add_u32 v19, v20, 9, v19")
    a(f"v_lshl_add_u32 {v(vSt)}, v12, 4, v19")
    order = []
    def dma(i):
        p, it = divmod(i, 16)
        sl = i % NR
        return [f"s_add_u32 m0, s41, {sl*STG}",
                f"s_mov_b32 s47, {it*64}",
                f"buffer_load_dwordx4 {v(vXd)}, s[16:19], s47 offen lds",
                f"s_add_u32 m0, s41, {sl*STG + 1024}",
                f"s_mov_b32 s47, {it*64 + 16384}",
                f"buffer_load_dwordx4 {v(vXd)}, s[16:19], s47 offen lds",
                f"s_add_u32 m0, s42, {sl*STG + XSZ}",
                f"s_mov_b32 s47, {it*32*8192 + p*256}",
                f"buffer_load_dwordx4 {v(vWd)}, s[20:23], s47 offen lds"]
    for i in range(5):
        for t in dma(i): a(t)
        order += [f'd{i}']*3
    a("s_cmp_ge_u32 s3, 2")
    a("s_cbranch_scc1 K1_NOLN")
    for c in range(5):
        a(f"buffer_load_dwordx4 {v(LN+4*c,4)}, v38, s[28:31], 0 offen offset:{256*c}")
    a.label("K1_NOLN")
    a.vm = []
    ACC = [128, 192]
    for i in range(128): a(f"v_mov_b32 {v(128+i)}, 0")
    XF = [64, 80]; WF = [96, 112]
    def reads(i, vtype):
        sl = i % NR; fs = i % 2
        out = []
        base_hi = sl*STG
        for t4 in range(4):
            if vtype == 0:
                reg = vWa[t4 % 2]; off = (t4//2)*64
            else:
                reg = vWa[t4 % 2]; off = (t4//2)*64
            for u in range(2):
                out.append(('W', t4, u))
        for kt in range(4): out.append(('X', kt))
        return out
    vWb = [23, 24]
    a(f"v_xor_b32 {v(vWb[0])}, 64, {v(vWa[0])}")
    a(f"v_xor_b32 {v(vWb[1])}, 64, {v(vWa[1])}")
    HI = 3
    vXh = [25, 26]; vWh = [27, 28, 29, 30]
    a(f"v_add_u32 {v(vXh[0])}, {HI*STG}, {v(vXa[0])}")
    a(f"v_add_u32 {v(vXh[1])}, {HI*STG}, {v(vXa[1])}")
    for k, r in enumerate(vWa + vWb): a(f"v_add_u32 {v(vWh[k])}, {HI*STG}, {v(r)}")
    def rd(i, vtype):
        sl = i % NR; fs = i % 2
        hi = sl >= HI
        so = (sl - (HI if hi else 0))*STG
        out = []
        for ct in range(4):
            k = (ct % 2) + 2*(ct//2)
            reg = (vWh if hi else (vWa + vWb))[k]
            for u in range(2):
                out.append(f"ds_read_b64_tr_b16 {v(WF[fs]+4*ct+2*u,2)}, {v(reg)} offset:{so + 4*u*256}")
        for kt in range(4):
            if vtype == 0:
                reg = (vXh if hi else vXa)[0]; off = kt*1024
            else:
                reg = (vXh if hi else vXa)[kt % 2]; off = (kt//2)*2048
            out.append(f"ds_read_b128 {v(XF[fs]+4*kt,4)}, {v(reg)} offset:{so + off}")
        return out
    def mfmas(i, vtype):
        fs = i % 2; A = ACC[i//16]
        out = []
        for kt in range(4):
            for ct in range(4):
                acc = v(A + (kt*4+ct)*4, 4)
                w = v(WF[fs]+4*ct, 4); x = v(XF[fs]+4*kt, 4)
                out.append(MF16(acc, w, x, acc) if vtype == 0 else MF16(acc, x, w, acc))
        return out
    def epi(p, vtype):
        A = ACC[p]
        groups = []
        pre = ["s_lshl_b32 s45, s43, 1", f"s_add_u32 s45, s45, {p}", "s_lshl_b32 s45, s45, 19",
               "s_lshl_b32 s46, s37, 3", "s_lshl_b32 s48, s39, 1", "s_add_u32 s46, s46, s48", "s_lshl_b32 s46, s46, 13",
               "s_add_u32 s45, s45, s46", "s_lshl_b32 s46, s40, 12", "s_add_u32 s49, s45, s46"]
        groups.append(pre)
        cnt = 0
        for x in range(4):
            for y in range(2):
                d = 32 + 4*(cnt % 2) if False else 12 + 4*(cnt % 2)
                cnt += 1
                if vtype == 0:
                    kt, pr = x, y
                    r0 = A + (kt*4 + 2*pr)*4; r1 = A + (kt*4 + 2*pr + 1)*4
                    so = (kt//2)*8192 + pr*2048; imm = (kt % 2)*256
                else:
                    ct, kp = x, y
                    r0 = A + ((2*kp)*4 + ct)*4; r1 = A + ((2*kp+1)*4 + ct)*4
                    so = kp*8192 + (ct//2)*2048; imm = (ct % 2)*256
                g = [f"v_cvt_pk_bf16_f32 {v(d)}, {v(r0)}, {v(r0+1)}", f"v_cvt_pk_bf16_f32 {v(d+1)}, {v(r0+2)}, {v(r0+3)}",
                     f"v_cvt_pk_bf16_f32 {v(d+2)}, {v(r1)}, {v(r1+1)}", f"v_cvt_pk_bf16_f32 {v(d+3)}, {v(r1+2)}, {v(r1+3)}",
                     f"s_add_u32 s48, s49, {so}",
                     f"buffer_store_dwordx4 {v(d,4)}, {v(vSt)}, s[24:27], s48 offen offset:{imm}" if 'nostore' not in FLAGS else f"buffer_store_dword {v(d)}, off, s[24:27], 0"]
                groups.append(g)
        return groups
    def wait_for(tag):
        idx = max(k for k, t in enumerate(order) if t == tag)
        a(f"s_waitcnt vmcnt({min(63, len(order) - 1 - idx)})")
    NS = 32
    wait_for('d0')
    a("s_barrier")
    a("s_cmp_eq_u32 s38, 0")
    a("s_cbranch_scc0 K1_VTYPE")
    snap = a.snapshot(); order0 = list(order)
    for vtype in range(2):
        if vtype == 1:
            a.label("K1_VTYPE"); a.restore(snap); order[:] = order0
        for t in rd(0, vtype): a(t)
        ep0 = epi(0, vtype)
        for i in range(NS):
            if i + 1 < NS:
                wait_for(f'd{i+1}')
                a("s_barrier")
            fill = []
            if i + 5 < NS:
                fill += dma(i+5); order += [f'd{i+5}']*3
            nx = rd(i+1, vtype) if i + 1 < NS else []
            extra = []
            if 17 <= i < 17 + len(ep0):
                extra = ep0[i - 17]
                if i > 17: order.append('st')
            a.vm = []
            interleave(a, mfmas(i, vtype), nx[:6] + fill + nx[6:] + extra)
            a.vm = []
        for g in epi(1, vtype):
            for t in g: a(t)
        a.vm = []
        if vtype == 0: a("s_branch K1_LN")
    a.label("K1_LN")
    a("s_cmp_ge_u32 s3, 2")
    a("s_cbranch_scc1 K1_END")
    a("s_waitcnt vmcnt(8)")
    emit_ln(a, data=LN, f32=64, n8=5, srd_out=32, rowreg=37, lane=0, frag_ks_stride=40, tmp=2)
    a.label("K1_END")
    a("s_endpgm")
```

```python
from gen_common import *
import math, os
from gen_wp import emit_relayout_issue, emit_relayout_finish
FLAGS = os.environ.get('K2FLAGS', '')

KBASE = 0
VBASE = 49152
SCR = 114688
WRING = 98304

O_ = 192; QA = 160; QB = 128; S_ = [96, 112]; P_ = [80, 88]; POOL = 48; TMP = 32; NEGM = 16
vL16 = 1; vKa = 2; vVa = 3; vL = [6, 7]; vZb = 8; vZ = 9; vDma = 10; vT0 = 11; vT1 = 12; vT2 = 13; vSt = 14; vNeg = 15
vWa = [4, 5, 8, 9]; vWd = 10
LOOK = int(os.environ.get('K2LOOK', '4'))

import re as _re
def MF(d, a_, b_, c_):
    if 'm16' in FLAGS:
        d0 = int(_re.match(r"v\[(\d+):", d).group(1)); c0 = int(_re.match(r"v\[(\d+):", c_).group(1))
        return [f"v_mfma_f32_16x16x32_bf16 v[{d0+4*k}:{d0+4*k+3}], {a_}, {b_}, v[{c0+4*k}:{c0+4*k+3}]" for k in (0, 2)]
    return f"v_mfma_f32_32x32x16_bf16 {d}, {a_}, {b_}, {c_}"

def gen_k2(a):
    STAMP = 'stamp' in FLAGS
    def stamp(i):
        if not STAMP: return
        a("s_memtime s[50:51]")
        a("s_waitcnt lgkmcnt(0)")
        a("v_mov_b32 v11, s50")
        a(f"s_add_u32 s52, s53, {i*4}")
        a("buffer_store_dword v11, off, s[56:59], s52")
        a.vm = []
    name = "k2_kernel"
    kernel_header(a, name)
    a("s_cmp_ge_u32 s2, 256")
    a("s_cbranch_scc1 K2_END")
    a("s_load_dwordx2 s[42:43], s[0:1], 16")
    a("s_load_dwordx2 s[44:45], s[0:1], 104")
    a("s_load_dwordx2 s[72:73], s[0:1], 40")
    a("s_load_dwordx2 s[74:75], s[0:1], 72")
    a("s_load_dwordx2 s[76:77], s[0:1], 56")
    a("v_lshrrev_b32 v1, 6, v0")
    a("v_and_b32 v0, 63, v0")
    a("v_readfirstlane_b32 s3, v1")
    a("s_lshr_b32 s4, s3, 2")
    a("s_and_b32 s5, s3, 3")
    a("s_and_b32 s6, s2, 7")
    a("s_lshl_b32 s6, s6, 2")
    a("s_lshr_b32 s7, s2, 3")
    a("s_and_b32 s46, s7, 3")
    a("s_add_u32 s6, s6, s46")
    a("s_lshr_b32 s7, s2, 5")
    a("s_lshl_b32 s40, s3, 11")
    CSC = math.log2(math.e)/math.sqrt(128.0)
    a(f"s_mov_b32 s36, {f32hex(CSC)}")
    a(f"s_mov_b32 s37, {f32hex(2.0**60)}")
    a("s_waitcnt lgkmcnt(0)")
    srd(a, 8, 44, 64*40*1024, add=WS_XN)
    srd(a, 12, 42, 640*4096*2)
    srd(a, 16, 44, 0x1000000, add=WS_KIMG)
    srd(a, 20, 44, 0x1000000, add=WS_VIMG)
    srd(a, 24, 44, 0x1000000, add=WS_CTX)
    if STAMP:
        a("s_load_dwordx2 s[54:55], s[0:1], 96")
        a("s_waitcnt lgkmcnt(0)")
        srd(a, 56, 54, 256)
        a("s_lshl_b32 s53, s3, 5")
        a("s_cmp_eq_u32 s2, 224")
        a("s_cselect_b32 s53, s53, 4096")
    stamp(0)
    a(f"v_lshlrev_b32 {v(vL16)}, 4, v0")
    a("s_sub_u32 s47, 15, s7")
    a("s_cmp_eq_u32 s4, 0")
    a("s_cselect_b32 s46, s47, s7")
    a("s_lshl_b32 s46, s46, 2")
    a("s_add_u32 s46, s46, s5")
    a("s_mul_i32 s46, s46, 40960")
    a("v_lshrrev_b32 v11, 4, v0")
    a("v_and_b32 v12, 15, v0")
    a("v_lshlrev_b32 v13, 2, v11")
    a("v_xor_b32 v12, v12, v13")
    a("v_lshlrev_b32 v12, 4, v12")
    a("s_lshl_b32 s47, s3, 3")
    a("v_add_u32 v11, s47, v11")
    a("v_lshlrev_b32 v11, 13, v11")
    a("s_lshl_b32 s47, s6, 8")
    a(f"v_add3_u32 {v(vWd)}, v11, v12, s47")
    a("v_and_b32 v11, 15, v0")
    a("v_lshrrev_b32 v12, 2, v11")
    a("v_and_b32 v13, 3, v11")
    a("v_lshrrev_b32 v14, 5, v0")
    a("v_lshlrev_b32 v14, 3, v14")
    a("v_add_u32 v14, v14, v12")
    a("v_lshlrev_b32 v14, 8, v14")
    a("v_lshrrev_b32 v15, 4, v0")
    a("v_and_b32 v15, 1, v15")
    a("v_lshlrev_b32 v15, 1, v15")
    a("v_and_b32 v11, 1, v13")
    a("v_add_u32 v15, v15, v11")
    a("v_lshlrev_b32 v12, 2, v12")
    a("v_xor_b32 v15, v15, v12")
    a("v_lshlrev_b32 v15, 4, v15")
    a("v_lshrrev_b32 v13, 1, v13")
    a("v_lshlrev_b32 v13, 3, v13")
    a(f"v_add3_u32 v14, v14, v15, v13")
    a(f"v_add_u32 {v(vWa[0])}, {WRING}, v14")
    for db in range(1, 4):
        a(f"v_xor_b32 {v(vWa[db])}, {db*64}, {v(vWa[0])}")
    ACC = O_
    XB = 96
    WF = [32, 48]
    NST = 10
    def wdma(st):
        out = []
        for i in range(2):
            out += [f"s_add_u32 m0, s40, {WRING + (st % 4)*16384 + i*1024}",
                    f"s_mov_b32 s47, {st*64*8192 + i*4*8192}",
                    f"buffer_load_dwordx4 {v(vWd)}, s[12:15], s47 offen lds"]
        return out
    def xload(ks):
        return [f"s_add_u32 s47, s46, {ks*1024}",
                f"buffer_load_dwordx4 {v(XB + 4*(ks % 8), 4)}, {v(vL16)}, s[8:11], s47 offen"]
    def wreads(ks, fs):
        st, ss = divmod(ks, 4)
        out = []
        for db in range(4):
            for u in range(2):
                out.append(f"ds_read_b64_tr_b16 {v(WF[fs]+4*db+2*u,2)}, {v(vWa[db])} offset:{(st % 4)*16384 + (16*ss+4*u)*256}")
        return out
    for st in range(3):
        for t in wdma(st): a(t)
    a.vm = []
    for ks in range(7):
        for t in xload(ks): a(t)
    order = ['d0']*2 + ['d1']*2 + ['d2']*2 + [f'x{k}' for k in range(7)]
    a("s_lshl_b32 s61, s2, 3")
    a("s_add_u32 s61, s61, s3")
    a("s_mul_i32 s62, s3, 5120")
    a(f"s_add_u32 s62, s62, {SCR}")
    for i in range(64): a(f"v_mov_b32 {v(ACC+i)}, 0")
    vKVd = 15
    a(f"v_add_u32 {v(vKVd)}, s40, {v(vL16)}")
    a("s_lshl_b32 s48, s6, 19")
    def dmaK(vd, wrap=True):
        o = [["s_add_u32 m0, s32, s40", "s_add_u32 s32, s32, 16384",
                f"buffer_load_dwordx4 {v(vd)}, s[16:19], s34 offen lds"],
                [f"buffer_load_dwordx4 {v(vd)}, s[16:19], s34 offen offset:1024 lds",
                "s_add_u32 s34, s34, 16384"],
                [f"s_cmp_eq_u32 s32, {KBASE+49152}",
                f"s_cselect_b32 s32, {KBASE}, s32"]]
        if wrap: o += [["s_cmp_eq_u32 s34, s63", "s_cselect_b32 s34, s48, s34"]]
        return o
    def dmaV(vd, wrap=True):
        o = [["s_add_u32 m0, s33, s40", "s_add_u32 s33, s33, 16384",
                f"buffer_load_dwordx4 {v(vd)}, s[20:23], s35 offen lds"],
                [f"buffer_load_dwordx4 {v(vd)}, s[20:23], s35 offen offset:1024 lds",
                "s_add_u32 s35, s35, 16384"],
                [f"s_cmp_eq_u32 s33, {VBASE+65536}",
                f"s_cselect_b32 s33, {VBASE}, s33"]]
        if wrap: o += [["s_cmp_eq_u32 s35, s63", "s_cselect_b32 s35, s48, s35"]]
        return o
    a(f"s_mov_b32 s32, {KBASE}")
    a(f"s_mov_b32 s33, {VBASE}")
    a("s_mov_b32 s34, s48")
    a("s_mov_b32 s35, s48")
    def wait_for(tag):
        idx = max(i for i, t in enumerate(order) if t == tag)
        n = len(order) - 1 - idx
        a(f"s_waitcnt vmcnt({n})")
    wait_for('d0')
    a("s_barrier")
    for t in wreads(0, 0): a(t)
    for st in range(NST):
        if st + 1 < NST:
            wait_for(f'd{st+1}')
            a("s_barrier")
        fill0 = []
        if st + 3 < NST:
            fill0 = wdma(st + 3)
        for ss in range(4):
            ks = st*4 + ss
            fs = ks % 2
            mm = [MF(v(ACC+16*db,16), v(WF[fs]+4*db,4), v(XB+4*(ks % 8),4), v(ACC+16*db,16)) for db in range(4)]
            wait_for(f'x{ks}')
            fill = []
            if ss == 0 and fill0:
                fill += fill0; order += [f'd{st+3}']*2
            if st == 7 and ss == 1:
                fill += [x for g_ in (dmaK(vKVd, False) + dmaK(vKVd, False) + dmaV(vKVd, False)) for x in g_]; order += ['kv']*6
            if ks + 1 < NST*4: fill += wreads(ks+1, 1-fs)
            if ks + 7 < NST*4:
                fill += xload(ks+7); order.append(f'x{ks+7}')
            a.vm = []
            interleave(a, mm, fill)
            a.vm = []
    stamp(1)
    a("s_barrier")
    for db in range(4):
        for r in range(16):
            a(f"v_mul_f32 {v(ACC+16*db+r)}, s36, {v(ACC+16*db+r)}")
    for db in range(4):
        for t in range(2):
            for j in range(4):
                r = ACC + 16*db + 8*t + 2*j
                a(f"v_cvt_pk_bf16_f32 {v(QA + 4*(2*db+t) + j)}, {v(r)}, {v(r+1)}")
    a("s_lshl_b32 s46, s3, 13")
    a(f"s_add_u32 s46, s46, {WRING}")
    a(f"v_add_u32 {v(vT0)}, s46, {v(vL16)}")
    for f in range(8):
        a(f"ds_write_b128 {v(vT0)}, {v(QA+4*f,4)} offset:{f*1024}")
    a("s_waitcnt lgkmcnt(0)")
    a("s_barrier")
    a("s_lshl_b32 s46, s5, 13")
    a(f"s_add_u32 s46, s46, {WRING}")
    a(f"v_add_u32 {v(vT0)}, s46, {v(vL16)}")
    for f in range(8):
        a(f"ds_read_b128 {v(QA+4*f,4)}, {v(vT0)} offset:{f*1024}")
        a(f"ds_read_b128 {v(QB+4*f,4)}, {v(vT0)} offset:{32768 + f*1024}")
    a(f"v_mov_b32 {v(vDma)}, {v(vKVd)}")
    a(f"v_lshrrev_b32 {v(vT2)}, 5, v0")
    a(f"v_and_b32 {v(vT1)}, 31, v0")
    a(f"v_lshlrev_b32 {v(vT2)}, 3, {v(vT2)}")
    a(f"v_sub_u32 {v(vT1)}, {v(vT1)}, {v(vT2)}")
    a("s_sub_u32 s46, s5, s4")
    a("s_lshl_b32 s46, s46, 5")
    a(f"v_add_u32 {v(vNeg)}, s46, {v(vT1)}")
    a("s_lshl_b32 s41, s4, 13")
    a(f"v_add_u32 {v(vSt)}, s41, {v(vL16)}")
    a("s_mov_b32 s39, 0")
    a("s_sub_u32 s38, 15, s7")
    a(f"s_mov_b32 s30, {KBASE}")
    a(f"s_mov_b32 s31, {VBASE}")
    a(f"v_mov_b32 {v(vT2)}, 0xff800000")
    a(f"v_mov_b32 {v(vT1)}, s37")
    a("s_waitcnt vmcnt(0) lgkmcnt(0)")
    a("s_barrier")
    a.vm = []
    if 'norl' not in FLAGS: emit_relayout_issue(a, 61, 62, 32, 64)
    a.vm = []
    if 'prio' in FLAGS:
        a("s_cmp_eq_u32 s4, 0")
        a("s_cbranch_scc1 K2_NOPRIO")
        a("s_setprio 1")
        a.label("K2_NOPRIO")
    stamp(2)
    a.label("K2_BLOCK")
    a("s_lshl_b32 s28, s38, 1")
    a("s_add_u32 s28, s28, 2")
    a("s_lshl_b32 s63, s28, 14")
    a("s_add_u32 s63, s63, s48")
    a("s_lshl_b32 s46, s38, 7")
    a(f"v_add_u32 {v(vZb)}, s46, {v(vNeg)}")
    for i in range(64): a(f"v_mov_b32 {v(O_+i)}, 0")
    for i in range(16): a(f"v_mov_b32 {v(NEGM+i)}, 0")
    a(f"v_mov_b32 {v(vL[0])}, 0")
    a(f"v_mov_b32 {v(vL[1])}, 0")
    a("s_mov_b32 s29, 0")
    def adv_k():
        return ["s_add_u32 s30, s30, 16384", f"s_cmp_eq_u32 s30, {KBASE+49152}", f"s_cselect_b32 s30, {KBASE}, s30"]
    def adv_v():
        return ["s_add_u32 s31, s31, 16384", f"s_cmp_eq_u32 s31, {VBASE+65536}", f"s_cselect_b32 s31, {VBASE}, s31"]

    slowsites = []
    def iteration(par, do_pv, do_qk, sm, masked, next_pv, pre, wait=4, dma=True, first=False):
        if wait is not None: a(f"s_waitcnt vmcnt({wait})")
        a("s_barrier")
        frags = []
        if do_pv:
            for t in range(2):
                for db in range(4):
                    frags.append(('V', db, t))
        if do_qk:
            for s_ in range(8): frags.append(('K', s_))
        nf = len(frags)
        def rd(k, nxt=False):
            f = ('V', k % 4, k // 4) if nxt else frags[k]
            buf = POOL + 4*(k % 8)
            if f[0] == 'V': return f"ds_read_b128 {v(buf,4)}, {v(vVa)} offset:{(f[1]*2+f[2])*1024}"
            return f"ds_read_b128 {v(buf,4)}, {v(vKa)} offset:{f[1]*1024}"
        def mf(k):
            f = frags[k]; buf = v(POOL + 4*(k % 8), 4)
            if f[0] == 'V':
                return MF(v(O_+16*f[1],16), buf, v(P_[1-par]+4*f[2],4), v(O_+16*f[1],16))
            sreg = v(S_[1-par],16)
            return MF(sreg, buf, v(QA+4*f[1],4), v(NEGM,16) if f[1] == 0 else sreg)
        head = []
        if do_qk:
            head.append(f"v_add_u32 {v(vKa)}, s30, {v(vSt)}")
            head += adv_k()
        for t in head: a(t)
        if not pre:
            for k in range(min(LOOK, nf)): a(rd(k))
        dm = (dmaK(vDma) + dmaV(vDma)) if dma else []
        val = []
        S = S_[par]; T = TMP; lo, ln = vL[1-par], vL[par]
        if sm:
            if masked:
                val.append(f"v_subrev_u32 {v(vZ)}, s29, {v(vZb)}")
                for r in range(16):
                    base = 16*(r//8) + (r % 8)
                    val.append(f"v_cmp_le_i32 vcc, {base}, {v(vZ)}")
                    val.append(f"v_cndmask_b32 {v(S+r)}, {v(vT2)}, {v(S+r)}, vcc")
            seq = []
            for r in range(16 + 2 if not first else 0):
                if r < 16: seq.append(f"v_exp_f32 {v(T+r)}, {v(S+r)}")
                if 0 <= r-2 < 16:
                    q = r-2
                    seq.append(f"v_add_f32 {v(ln)}, {v(lo if q == 0 else ln)}, {v(T+q)}")
                    if q % 2 == 1: seq.append(f"v_cvt_pk_bf16_f32 {v(P_[par]+q//2)}, {v(T+q-1)}, {v(T+q)}")
            val += seq
        fillers = [[] for _ in range(max(nf, 1))]
        for k in range(nf):
            kk = k + LOOK
            if kk < nf:
                fillers[k].append(rd(kk))
            elif next_pv:
                if kk == nf:
                    fillers[k].append(f"v_add_u32 {v(vVa)}, s31, {v(vSt)}")
                    fillers[k] += adv_v()
                fillers[k].append(rd(kk - nf, nxt=True))
        for i, t in enumerate(dm): fillers[min(i, nf-1)] += t
        nv = len(val)
        di = 0
        for k in range(nf):
            want = (nv * (k+1)) // nf
            fillers[k] += val[di:want]; di = want
        for k in range(nf):
            a(mf(k))
            for t in fillers[k]: a(t)
        a.vm = []
        if sm:
            a("s_add_u32 s29, s29, 64")
            lab = a.newlabel("K2_SLOW"); ret = a.newlabel("K2_RET")
            if first:
                a(f"s_branch {lab}")
            else:
                a(f"v_cmp_nle_f32 vcc, {v(ln)}, {v(vT1)}")
                a(f"s_cbranch_vccnz {lab}")
            a.label(ret)
            slowsites.append((lab, ret, par, a.snapshot(), do_qk, first))

    iteration(1, False, True, False, False, False, False, wait=None)
    iteration(0, False, True, True, True, True, False, wait=None, first=True)
    a("s_cmp_eq_u32 s28, 2")
    a("s_cbranch_scc1 K2_E")
    a("s_sub_u32 s49, s28, 4")
    a("s_lshr_b32 s49, s49, 1")
    snap = a.snapshot()
    a("s_cmp_eq_u32 s49, 0")
    a("s_cbranch_scc1 K2_C3")
    a.label("K2_LOOP")
    iteration(1, True, True, True, False, True, True)
    iteration(0, True, True, True, False, True, True)
    a("s_sub_u32 s49, s49, 1")
    a("s_cmp_lg_u32 s49, 0")
    a("s_cbranch_scc1 K2_LOOP")
    assert a.snapshot() == snap, (a.snapshot(), snap)
    a.label("K2_C3")
    iteration(1, True, True, True, False, True, True)
    iteration(0, True, True, True, True, True, True)
    assert a.snapshot() == snap
    a.label("K2_E")
    iteration(1, True, False, True, True, True, True, dma=False)
    a("s_cmp_lg_u32 s39, 0" if 'norl' not in FLAGS else "s_cmp_lg_u32 s39, 7")
    a("s_cbranch_scc1 K2_NORL")
    snapr = a.snapshot()
    a("s_waitcnt vmcnt(0)")
    sv = a.vm; a.vm = []
    emit_relayout_finish(a, 62, 100, 104, 64)
    a("s_waitcnt lgkmcnt(4)")
    a.vm = []
    a.lgkm = [set(x) for x in snapr[0]]
    a.label("K2_NORL")
    iteration(0, True, False, False, False, False, True, wait=None, dma=False)
    if STAMP:
        a("s_lshl_b32 s60, s39, 3")
        a("s_add_u32 s53, s53, s60")
    stamp(3)
    lf = vL[1]
    a(f"v_mov_b32 {v(vT0)}, {v(lf)}")
    a("s_nop 1")
    a(f"v_permlane32_swap_b32 {v(lf)}, {v(vT0)}")
    a(f"v_add_f32 {v(lf)}, {v(lf)}, {v(vT0)}")
    a("s_mul_i32 s46, s3, 4608")
    a(f"s_add_u32 s46, s46, {SCR}")
    a(f"v_add_u32 {v(vT0)}, s46, {v(vL16)}")
    a(f"v_lshrrev_b32 {v(vZ)}, 2, {v(vL16)}")
    a(f"v_add_u32 {v(vZ)}, s46, {v(vZ)}")
    a("s_xor_b32 s46, s3, 4")
    a("s_mul_i32 s46, s46, 4608")
    a(f"s_add_u32 s46, s46, {SCR}")
    vR0, vR1 = 96, 97
    a(f"v_add_u32 {v(vR0)}, s46, {v(vL16)}")
    a(f"v_lshrrev_b32 {v(vR1)}, 2, {v(vL16)}")
    a(f"v_add_u32 {v(vR1)}, s46, {v(vR1)}")
    R = 32
    mo, lo_ = 64, 65
    a(f"ds_write_b32 {v(vZ)}, {v(NEGM)} offset:4096")
    a(f"ds_write_b32 {v(vZ)}, {v(lf)} offset:4352")
    a("s_cmp_eq_u32 s4, 0")
    a("s_cbranch_scc0 K2_MRG1")
    snap2 = a.snapshot()
    for variant in range(2):
        if variant == 1:
            a.label("K2_MRG1"); a.restore(snap2)
        src = O_ + (32 if variant == 0 else 0)
        own = O_ + (0 if variant == 0 else 32)
        for rnd in range(2):
            for f in range(4):
                a(f"ds_write_b128 {v(vT0)}, {v(src+16*rnd+4*f,4)} offset:{f*1024}")
            a("s_waitcnt lgkmcnt(0)")
            a("s_barrier")
            if rnd == 0:
                a(f"ds_read_b32 {v(mo)}, {v(vR1)} offset:4096")
                a(f"ds_read_b32 {v(lo_)}, {v(vR1)} offset:4352")
            for f in range(4):
                a(f"ds_read_b128 {v(R+16*rnd+4*f,4)}, {v(vR0)} offset:{f*1024}")
            a("s_waitcnt lgkmcnt(0)")
            a("s_barrier")
        mt, ao, ap = 66, 67, 68
        a(f"v_min_f32 {v(mt)}, {v(NEGM)}, {v(mo)}")
        a(f"v_sub_f32 {v(ao)}, {v(mt)}, {v(NEGM)}")
        a(f"v_sub_f32 {v(ap)}, {v(mt)}, {v(mo)}")
        a(f"v_exp_f32 {v(ao)}, {v(ao)}")
        a(f"v_exp_f32 {v(ap)}, {v(ap)}")
        a(f"v_mul_f32 {v(lf)}, {v(lf)}, {v(ao)}")
        a(f"v_fmac_f32 {v(lf)}, {v(lo_)}, {v(ap)}")
        a(f"v_rcp_f32 {v(lf)}, {v(lf)}")
        a(f"v_mul_f32 {v(ao)}, {v(ao)}, {v(lf)}")
        a(f"v_mul_f32 {v(ap)}, {v(ap)}, {v(lf)}")
        a("s_lshl_b32 s46, s38, 2")
        a("s_add_u32 s46, s46, s5")
        a("s_lshl_b32 s46, s46, 18")
        a("s_lshl_b32 s47, s6, 13")
        a("s_add_u32 s46, s46, s47")
        a("s_lshl_b32 s47, s4, 12")
        a("s_add_u32 s46, s46, s47")
        for i in range(32):
            a(f"v_mul_f32 {v(own+i)}, {v(own+i)}, {v(ao)}")
            a(f"v_fmac_f32 {v(own+i)}, {v(R+i)}, {v(ap)}")
        for f in range(4):
            d = 100 + 4*f
            for j in range(4):
                a(f"v_cvt_pk_bf16_f32 {v(d+j)}, {v(own+8*f+2*j)}, {v(own+8*f+2*j+1)}")
            a(f"buffer_store_dwordx4 {v(d,4)}, {v(vL16)}, s[24:27], s46 offen offset:{f*1024}")
        a.vm = []
        if variant == 0: a("s_branch K2_FIN")
    a.label("K2_FIN")
    stamp(4)
    a("s_add_u32 s39, s39, 1")
    a("s_cmp_eq_u32 s39, 2")
    a("s_cbranch_scc1 K2_END")
    for i in range(32): a(f"v_mov_b32 {v(QA+i)}, {v(QB+i)}")
    a("s_mov_b32 s38, s7")
    a("s_waitcnt vmcnt(4)")
    a("s_branch K2_BLOCK")
    a.label("K2_END")
    a("s_endpgm")
    for (lab, ret, par, snap_, had_qk, first) in slowsites:
        a.label(lab); a.restore(snap_)
        S = S_[par]; T = TMP; lo, ln = vL[1-par], vL[par]
        x = vT0; y = vZ
        a(f"v_max3_f32 {v(x)}, {v(S)}, {v(S+1)}, {v(S+2)}")
        for r in range(3, 15, 2):
            a(f"v_max3_f32 {v(x)}, {v(x)}, {v(S+r)}, {v(S+r+1)}")
        if first:
            a(f"v_mov_b32 {v(y)}, {f32hex(-1e30)}")
            a(f"v_max3_f32 {v(x)}, {v(x)}, {v(S+15)}, {v(y)}")
        else:
            a(f"v_max3_f32 {v(x)}, {v(x)}, {v(S+15)}, 0")
        a(f"v_mov_b32 {v(y)}, {v(x)}")
        a("s_nop 1")
        a(f"v_permlane32_swap_b32 {v(x)}, {v(y)}")
        a(f"v_max_f32 {v(x)}, {v(x)}, {v(y)}")
        for i in range(16): a(f"v_sub_f32 {v(NEGM+i)}, {v(NEGM+i)}, {v(x)}")
        if first:
            a(f"v_mov_b32 {v(ln)}, 0")
        else:
            a(f"v_sub_f32 {v(y)}, 0, {v(x)}")
            a(f"v_exp_f32 {v(y)}, {v(y)}")
            for i in range(64): a(f"v_mul_f32 {v(O_+i)}, {v(O_+i)}, {v(y)}")
            a(f"v_mul_f32 {v(ln)}, {v(lo)}, {v(y)}")
        if had_qk:
            S2 = S_[1-par]
            for r in range(16): a(f"v_sub_f32 {v(S2+r)}, {v(S2+r)}, {v(x)}")
        for r in range(16): a(f"v_sub_f32 {v(T+r)}, {v(S+r)}, {v(x)}")
        for r in range(16): a(f"v_exp_f32 {v(T+r)}, {v(T+r)}")
        for r in range(16): a(f"v_add_f32 {v(ln)}, {v(ln)}, {v(T+r)}")
        for r in range(8): a(f"v_cvt_pk_bf16_f32 {v(P_[par]+r)}, {v(T+2*r)}, {v(T+2*r+1)}")
        a(f"s_branch {ret}")
```

```python
from gen_common import *
from gen_wp import WS_HF, WS_STAT, WS_WF1, MF16
import math

def gen_k5(a, name="k5_kernel"):
    U = name.upper()
    NT = 4; NK = 20; D = 5; WST = 20
    kernel_header(a, name)
    a("s_cmp_ge_u32 s2, 224")
    a(f"s_cbranch_scc1 {U}_END")
    a("s_load_dwordx2 s[6:7], s[0:1], 104")
    a("s_load_dwordx2 s[24:25], s[0:1], 64")
    a("v_lshrrev_b32 v1, 6, v0")
    a("v_and_b32 v0, 63, v0")
    a("v_readfirstlane_b32 s3, v1")
    a("s_and_b32 s30, s2, 7")
    a("s_lshl_b32 s30, s30, 2")
    a("s_lshr_b32 s31, s2, 3")
    a("s_and_b32 s33, s31, 3")
    a("s_add_u32 s30, s30, s33")
    a("s_lshr_b32 s31, s2, 5")
    vL16 = 2; vXa = 1
    a(f"v_lshlrev_b32 {v(vL16)}, 4, v0")
    a("v_lshrrev_b32 v3, 5, v0")
    a("v_lshlrev_b32 v3, 11, v3")
    a("v_lshrrev_b32 v4, 4, v0")
    a("v_and_b32 v4, 1, v4")
    a("v_lshl_add_u32 v3, v4, 9, v3")
    a("v_and_b32 v4, 15, v0")
    a(f"v_lshl_add_u32 {v(vXa)}, v4, 4, v3")
    a(f"v_add_u32 v3, 40960, {v(vXa)}")
    a("s_lshl_b32 s37, s31, 4")
    a("s_lshl_b32 s38, s3, 2")
    a("s_add_u32 s37, s37, s38")
    a("s_lshl_b32 s39, s37, 4")
    a(f"s_mul_i32 s37, s37, {WST*1024}")
    a(f"s_mul_i32 s36, s30, {2*40*1024}")
    a("s_lshl_b32 s40, s3, 10")
    a("s_waitcnt lgkmcnt(0)")
    srd(a, 8, 6, 64*40*1024, add=WS_HF)
    srd(a, 12, 6, 112*WST*1024, add=WS_WF1)
    srd(a, 16, 6, 64*108*1024, add=WS_H1)
    srd(a, 20, 24, 1728*2)
    srd(a, 44, 6, 8*2048*8, add=WS_STAT)
    order = []
    ACC = 176; CS = 240
    FB = 64
    XF = 144
    ONE = 60
    ST = 12
    BI = 28
    a("s_lshl_b32 s41, s30, 6")
    a("v_add_u32 v5, s41, v0")
    a("v_lshlrev_b32 v5, 3, v5")
    for k in range(8):
        a(f"s_mov_b32 s42, {k*2048*8}")
        a(f"buffer_load_dwordx2 {v(ST+2*k,2)}, v5, s[44:47], s42 offen")
    a("v_lshrrev_b32 v6, 4, v0")
    a("v_lshlrev_b32 v6, 3, v6")
    a("s_lshl_b32 s42, s39, 1")
    for nt in range(NT):
        a(f"buffer_load_dwordx2 {v(BI+2*nt,2)}, v6, s[20:23], s42 offen offset:{nt*32}")
    order += ['st']*12
    a("s_lshr_b32 s41, s3, 1")
    a("s_and_b32 s42, s3, 1")
    a(f"s_mul_i32 s42, s42, {40*1024}")
    a("s_lshl_b32 s41, s41, 10")
    a("s_add_u32 s41, s41, s42")
    a("s_add_u32 s41, s41, s36")
    def xdma(j):
        return [f"s_add_u32 m0, s40, {j*4096}",
                f"s_add_u32 s42, s41, {j*2048}",
                f"buffer_load_dwordx4 {v(vL16)}, s[8:11], s42 offen lds"]
    def wloads(s_):
        b = FB + 16*(s_ % D)
        return [[f"s_add_u32 s45, s37, {(nt*WST + s_)*1024}",
                 f"buffer_load_dwordx4 {v(b+4*nt,4)}, {v(vL16)}, s[12:15], s45 offen"] for nt in range(NT)]
    for c in range(4):
        for j in range(5*c, 5*c+5):
            for t in xdma(j): a(t)
        order += [f'xc{c}']*5
        if c < D:
            for g in wloads(c):
                for t in g: a(t)
            order += [f'w{c}']*NT
    for g in wloads(4):
        for t in g: a(t)
    order += ['w4']*NT
    a.vm = []
    for i in range(ACC, 256): a(f"v_mov_b32 {v(i)}, 0")
    for i in range(4): a(f"v_mov_b32 {v(ONE+i)}, 0x3f803f80")
    def wait_for(*tags):
        idx = max(i for i, t in enumerate(order) if t in tags)
        a(f"s_waitcnt vmcnt({min(63, len(order) - 1 - idx)})")
    def xreads(s_):
        b = XF + 16*(s_ % 2)
        base, off = (vXa, 0) if s_ < 10 else (3, 40960)
        return [f"ds_read_b128 {v(b+4*qt,4)}, {v(base)} offset:{s_*4096 - off + (qt//2)*1024 + (qt % 2)*256}" for qt in range(4)]
    wait_for('xc0')
    a("s_barrier")
    for t in xreads(0): a(t)
    for s_ in range(NK):
        b = FB + 16*(s_ % D); xb = XF + 16*(s_ % 2)
        if (s_ + 1) % 5 == 0 and s_ + 1 < NK:
            wait_for(f'xc{(s_+1)//5}', f'w{s_}')
            a("s_barrier")
        else:
            wait_for(f'w{s_}')
        wl = wloads(s_ + D) if s_ + D < NK else [[]]*NT
        if s_ + D < NK: order += [f'w{s_+D}']*NT
        a.vm = []
        nx = xreads(s_+1) if s_ + 1 < NK else []
        for nt in range(NT):
            for qt in range(4):
                acc = v(ACC + (qt*NT+nt)*4, 4)
                a(MF16(acc, v(b+4*nt,4), v(xb+4*qt,4), acc))
            a(MF16(v(CS+4*nt,4), v(b+4*nt,4), v(ONE,4), v(CS+4*nt,4)))
            if nx: a(nx[nt])
            for t in wl[nt]: a(t)
        a.vm = []
        if s_ == 10:
            for k in range(1, 8):
                a(f"v_add_f32 {v(ST)}, {v(ST)}, {v(ST+2*k)}")
                a(f"v_add_f32 {v(ST+1)}, {v(ST+1)}, {v(ST+2*k+1)}")
            a(f"v_mul_f32 v4, {f32hex(1/640.0)}, {v(ST)}")
            a(f"v_mul_f32 v5, {f32hex(1/640.0)}, {v(ST+1)}")
            a("v_fma_f32 v5, -v4, v4, v5")
            a("v_max_f32 v5, 0, v5")
            a(f"v_add_f32 v5, {f32hex(1e-5)}, v5")
            a("v_rsq_f32 v5, v5")
            a("s_nop 0")
            a("v_mul_f32 v4, v4, v5")
            a("v_sub_f32 v4, 0, v4")
            a("v_and_b32 v6, 15, v0")
            a("v_lshlrev_b32 v6, 2, v6")
            for qt in range(4):
                a(f"v_add_u32 v7, {64*qt}, v6")
                a(f"ds_bpermute_b32 {v(ST+2+2*qt)}, v7, v5")
                a(f"ds_bpermute_b32 {v(ST+3+2*qt)}, v7, v4")
            a("s_waitcnt lgkmcnt(0)")
            if s_ + 1 < NK: pass
    c1 = -2.0*math.sqrt(2.0/math.pi)*math.log2(math.e); c2 = c1*0.044715
    a(f"v_mov_b32 v4, {f32hex(c1)}")
    a(f"v_mov_b32 v5, {f32hex(c1)}")
    a(f"v_mov_b32 v6, {f32hex(c2)}")
    a(f"v_mov_b32 v7, {f32hex(c2)}")
    a("v_mov_b32 v8, 1.0")
    a("v_mov_b32 v9, 1.0")
    BF = 36
    for nt in range(NT):
        for j in range(2):
            a(f"v_lshlrev_b32 {v(BF+4*nt+2*j)}, 16, {v(BI+2*nt+j)}")
            a(f"v_and_b32 {v(BF+4*nt+2*j+1)}, 0xffff0000, {v(BI+2*nt+j)}")
    a("v_lshrrev_b32 v10, 4, v0")
    a("v_lshrrev_b32 v11, 1, v10")
    a("v_lshlrev_b32 v11, 9, v11")
    a("v_and_b32 v10, 1, v10")
    a("v_lshl_add_u32 v11, v10, 3, v11")
    a("v_and_b32 v10, 15, v0")
    a("v_lshl_add_u32 v11, v10, 4, v11")
    a(f"s_mul_i32 s41, s30, {2*108*1024}")
    a("s_lshl_b32 s42, s39, 6")
    a("s_add_u32 s41, s41, s42")
    T = 64
    for qt in range(4):
        rs = ST + 2 + 2*qt; mb = ST + 3 + 2*qt
        for nt in range(NT):
            r = ACC + (qt*NT+nt)*4
            t_ = T + 8*((qt*NT+nt) % 4)
            for j in range(4): a(f"v_fma_f32 {v(t_+j)}, {v(mb)}, {v(CS+4*nt+j)}, {v(BF+4*nt+j)}")
            for j in range(4): a(f"v_fma_f32 {v(r+j)}, {v(rs)}, {v(r+j)}, {v(t_+j)}")
            for j in (0, 2): a(f"v_pk_mul_f32 {v(t_+j,2)}, {v(r+j,2)}, {v(r+j,2)}")
            for j in (0, 2): a(f"v_pk_fma_f32 {v(t_+j,2)}, {v(t_+j,2)}, v[6:7], v[4:5]")
            for j in (0, 2): a(f"v_pk_mul_f32 {v(t_+j,2)}, {v(t_+j,2)}, {v(r+j,2)}")
            for j in range(4): a(f"v_exp_f32 {v(t_+j)}, {v(t_+j)}")
            for j in (0, 2): a(f"v_pk_add_f32 {v(t_+j,2)}, {v(t_+j,2)}, v[8:9]")
            for j in range(4): a(f"v_rcp_f32 {v(t_+j)}, {v(t_+j)}")
            for j in (0, 2): a(f"v_pk_mul_f32 {v(t_+j,2)}, {v(t_+j,2)}, {v(r+j,2)}")
            a(f"v_cvt_pk_bf16_f32 {v(t_+4)}, {v(t_)}, {v(t_+1)}")
            a(f"v_cvt_pk_bf16_f32 {v(t_+5)}, {v(t_+2)}, {v(t_+3)}")
            lab = a.newlabel(U + "_SK")
            a(f"s_add_u32 s42, s39, {16*nt}")
            a("s_cmp_ge_u32 s42, 1728")
            a(f"s_cbranch_scc1 {lab}")
            a(f"s_add_u32 s42, s41, {(qt//2)*108*1024 + nt*1024}")
            a(f"buffer_store_dwordx2 {v(t_+4,2)}, v11, s[16:19], s42 offen offset:{(qt % 2)*256}")
            a.label(lab)
    a.label(f"{U}_END")
    a("s_endpgm")
```

```python
from gen_common import *
from gen_wp import WS_HF, WS_STAT, WS_WFO, WS_WF2, WS_WF1, MF16
import math, os
TF = os.environ.get('TFLAGS', '')
SC = " sc1"

vTid = 10

def sync_group(a, cnt_off_s, expect, tag, signal=True):
    a("s_waitcnt vmcnt(0) lgkmcnt(0)")
    a("s_barrier")
    L1 = a.newlabel(f"SY{tag}A"); L2 = a.newlabel(f"SY{tag}B"); L3 = a.newlabel(f"SY{tag}C")
    a("s_cmp_lg_u32 s3, 0")
    a(f"s_cbranch_scc1 {L3}")
    if signal:
        a("v_mov_b32 v4, 1")
        a("s_mov_b64 s[66:67], exec")
        a("s_mov_b64 exec, 1")
        a(f"buffer_atomic_add v4, off, s[52:55], {s(cnt_off_s)} sc1")
        a("s_mov_b64 exec, s[66:67]")
    a("s_mov_b32 s68, 0")
    a.label(L1)
    a(f"buffer_load_dword v4, off, s[52:55], {s(cnt_off_s)} sc1")
    a("s_waitcnt vmcnt(0)")
    a("v_readfirstlane_b32 s69, v4")
    a(f"s_cmp_ge_u32 s69, {expect}")
    a(f"s_cbranch_scc1 {L3}")
    a("s_add_u32 s68, s68, 1")
    a("s_cmp_ge_u32 s68, 2000000")
    a(f"s_cbranch_scc1 {L3}")
    a("s_sleep 2")
    a(f"s_branch {L1}")
    a.label(L3)
    a.vm = []; a.lgkm = []
    a("s_barrier")

def wp_phase(a, mode, prefetched=False, hook_after_main=None):
    cfg = dict(
        oproj=dict(xoff=WS_CTX, nks=256, woff=WS_WFO, wsteps=128, wn16=40, NK=32),
        ffn2=dict(xoff=WS_H1, nks=108, woff=WS_WF2, wsteps=56, wn16=40, NK=14))[mode]
    NT = 5; D = 4
    NK, NKS, WST = cfg['NK'], cfg['nks'], cfg['wsteps']
    xsc = SC if mode == 'ffn2' else ""
    vX = 1; vL16 = 2
    a("v_lshrrev_b32 v2, 5, v0")
    a("v_lshlrev_b32 v2, 10, v2")
    a("v_lshrrev_b32 v3, 4, v0")
    a("v_and_b32 v3, 1, v3")
    a("v_lshl_add_u32 v2, v3, 9, v2")
    a("v_and_b32 v3, 15, v0")
    a(f"v_lshl_add_u32 {v(vX)}, v3, 4, v2")
    a(f"v_lshlrev_b32 {v(vL16)}, 4, v0")
    a(f"s_mul_i32 s36, s30, {2*NKS*1024}")
    a(f"s_mul_i32 s40, s3, {NK*2048}")
    a("s_add_u32 s36, s36, s40")
    a(f"s_add_u32 s35, s36, {NKS*1024}")
    srd(a, 8, 6, 64*NKS*1024, add=cfg['xoff'])
    ACC = 176
    XB = 12
    WB = 76
    if not prefetched:
        wp_wsetup(a, mode)
    def xl(s_):
        b = XB + 16*(s_ % D)
        return [f"s_add_u32 s71, s36, {s_*2048}",
              f"s_add_u32 s72, s35, {s_*2048}",
              f"buffer_load_dwordx4 {v(b,4)}, {v(vX)}, s[8:11], s71 offen{xsc}",
              f"buffer_load_dwordx4 {v(b+4,4)}, {v(vX)}, s[8:11], s71 offen offset:256{xsc}",
              f"buffer_load_dwordx4 {v(b+8,4)}, {v(vX)}, s[8:11], s72 offen{xsc}",
              f"buffer_load_dwordx4 {v(b+12,4)}, {v(vX)}, s[8:11], s72 offen offset:256{xsc}"]
    NL = 4 + NT
    if prefetched:
        for s_ in range(D):
            for t in xl(s_): a(t)
    else:
        for s_ in range(D):
            for g in wp_wl(mode, s_):
                for t in g: a(t)
            for t in xl(s_): a(t)
    for i in range(ACC, 256): a(f"v_mov_b32 {v(i)}, 0")
    a.vm = []
    q = [(4 if prefetched else NL)]*D
    for s_ in range(NK):
        a(f"s_waitcnt vmcnt({min(63, sum(q[s_+1:]))})")
        more = s_ + D < NK
        wl = wp_wl(mode, s_ + D) if more else [[]]*NT
        if more: q.append(NL)
        a.vm = []
        xb = XB + 16*(s_ % D); wb = WB + 20*(s_ % D)
        for nt in range(NT):
            for qt in range(4):
                acc = v(ACC + (qt*NT+nt)*4, 4)
                a(MF16(acc, v(wb+4*nt,4), v(xb+4*qt,4), acc))
            for t in wl[nt]: a(t)
        if more:
            for t in xl(s_ + D): a(t)
        a.vm = []
    PER = 20; NV = 5; TILE_N = 80
    a(f"v_lshrrev_b32 v4, 2, {v(vTid)}")
    a(f"v_and_b32 v5, 3, {v(vTid)}")
    a("s_lshl_b32 s40, s30, 6")
    a("v_add_u32 v8, s40, v4")
    a(f"s_mul_i32 s41, s31, {TILE_N}")
    a(f"v_mul_u32_u24 v9, {PER}, v5")
    a("v_add_u32 v9, s41, v9")
    F = 12; G = 32; AD = 52; X = 58; B2 = 68
    a("v_lshrrev_b32 v6, 5, v8")
    a("v_mul_u32_u24 v6, 40960, v6")
    a("v_and_b32 v7, 31, v8")
    a("v_lshl_add_u32 v6, v7, 4, v6")
    for i in range(5):
        a(f"v_add_u32 v7, {4*i}, v9")
        a(f"v_lshrrev_b32 {v(AD+i)}, 3, v7")
        a(f"v_lshl_add_u32 {v(AD+i)}, {v(AD+i)}, 9, v6")
        a("v_and_b32 v7, 7, v7")
        a(f"v_lshl_add_u32 {v(AD+i)}, v7, 1, {v(AD+i)}")
    a(f"v_mul_u32_u24 {v(AD+5)}, 1280, v8")
    a(f"v_lshl_add_u32 {v(AD+5)}, v9, 1, {v(AD+5)}")
    srd(a, 16, 6, 64*40*1024, add=WS_HF)
    if mode == 'oproj':
        srd(a, 20, 24, 2048*640*2)
        srd(a, 44, 6, 8*2048*8, add=WS_STAT)
        for i in range(5): a(f"buffer_load_dwordx2 {v(X+2*i,2)}, {v(AD+5)}, s[20:23], 0 offen offset:{8*i}")
    else:
        srd(a, 20, 28, 640*2)
        srd(a, 44, 48, 2048*640*2)
        a("v_lshlrev_b32 v6, 1, v9")
        for i in range(5): a(f"buffer_load_dwordx2 {v(X+2*i,2)}, {v(AD+i)}, s[16:19], 0 offen{SC}")
        for i in range(5): a(f"buffer_load_dwordx2 {v(B2+2*i,2)}, v6, s[20:23], 0 offen offset:{8*i}")
    RP = NT*64 + 16; WSZ = 64*RP
    a("v_and_b32 v6, 15, v0")
    a(f"v_mul_u32_u24 v6, {RP}, v6")
    a("v_lshrrev_b32 v7, 4, v0")
    a("v_lshl_add_u32 v6, v7, 4, v6")
    a(f"s_mul_i32 s40, s3, {WSZ}")
    a("v_add_u32 v6, s40, v6")
    if mode == 'ffn2': a("s_barrier")
    for qt in range(4):
        for nt in range(NT):
            a(f"ds_write_b128 v6, {v(ACC+(qt*NT+nt)*4,4)} offset:{qt*16*RP + nt*64}")
    if hook_after_main: hook_after_main()
    a("s_waitcnt lgkmcnt(0)")
    a("s_barrier")
    a(f"v_mul_u32_u24 v6, {RP}, v4")
    a(f"v_mul_u32_u24 v7, {PER*4}, v5")
    a("v_add_u32 v6, v6, v7")
    for k in range(4):
        off = k*WSZ
        dst = F if k == 0 else G
        base = "v6"
        if off + 16*NV > 65535:
            a(f"v_add_u32 v7, {off}, v6"); base = "v7"; off = 0
        for i in range(NV):
            a(f"ds_read_b128 {v(dst+4*i,4)}, {base} offset:{off + 16*i}")
        if k > 0:
            for i in range(PER): a(f"v_add_f32 {v(F+i)}, {v(F+i)}, {v(G+i)}")
    if mode == 'oproj':
        for i in range(10):
            a(f"v_lshlrev_b32 v6, 16, {v(X+i)}")
            a(f"v_add_f32 {v(F+2*i)}, {v(F+2*i)}, v6")
            a(f"v_and_b32 v7, 0xffff0000, {v(X+i)}")
            a(f"v_add_f32 {v(F+2*i+1)}, {v(F+2*i+1)}, v7")
        for i in range(10): a(f"v_cvt_pk_bf16_f32 {v(G+i)}, {v(F+2*i)}, {v(F+2*i+1)}")
        for i in range(5): a(f"buffer_store_dwordx2 {v(G+2*i,2)}, {v(AD+i)}, s[16:19], 0 offen{SC}")
        for i in range(10):
            a(f"v_lshlrev_b32 {v(F+2*i)}, 16, {v(G+i)}")
            a(f"v_and_b32 {v(F+2*i+1)}, 0xffff0000, {v(G+i)}")
        a(f"v_add_f32 v6, {v(F)}, {v(F+1)}")
        a(f"v_mul_f32 v7, {v(F)}, {v(F)}")
        for i in range(2, 20): a(f"v_add_f32 v6, v6, {v(F+i)}")
        for i in range(1, 20): a(f"v_fmac_f32 v7, {v(F+i)}, {v(F+i)}")
        for perm in ("[1,0,3,2]", "[2,3,0,1]"):
            a(f"v_add_f32_dpp v4, v6, v6 quad_perm:{perm} row_mask:0xf bank_mask:0xf")
            a(f"v_add_f32_dpp v5, v7, v7 quad_perm:{perm} row_mask:0xf bank_mask:0xf")
            a("v_mov_b32 v6, v4")
            a("v_mov_b32 v7, v5")
        a("s_lshl_b32 s40, s31, 11")
        a("v_add_u32 v4, s40, v8")
        a("v_lshlrev_b32 v4, 3, v4")
        a(f"buffer_store_dwordx2 v[6:7], v4, s[44:47], 0 offen{SC}")
    else:
        for src in (X, B2):
            for i in range(10):
                a(f"v_lshlrev_b32 v6, 16, {v(src+i)}")
                a(f"v_add_f32 {v(F+2*i)}, {v(F+2*i)}, v6")
                a(f"v_and_b32 v7, 0xffff0000, {v(src+i)}")
                a(f"v_add_f32 {v(F+2*i+1)}, {v(F+2*i+1)}, v7")
        for i in range(10): a(f"v_cvt_pk_bf16_f32 {v(G+i)}, {v(F+2*i)}, {v(F+2*i+1)}")
        for i in range(5): a(f"buffer_store_dwordx2 {v(G+2*i,2)}, {v(AD+5)}, s[44:47], 0 offen offset:{8*i}")

def wp_wsetup(a, mode):
    woff, WST, NK = (WS_WFO, 128, 32) if mode == 'oproj' else (WS_WF2, 56, 14)
    a(f"v_lshlrev_b32 v2, 4, v0")
    a(f"s_mul_i32 s37, s31, {5*WST*1024}")
    a(f"s_mul_i32 s38, s3, {NK*1024}")
    a("s_add_u32 s37, s37, s38")
    srd(a, 12, 6, 40*WST*1024, add=woff)

def wp_wl(mode, s_):
    WST = 128 if mode == 'oproj' else 56
    b = 76 + 20*(s_ % 4)
    return [[f"s_add_u32 s70, s37, {(nt*WST + s_)*1024}",
             f"buffer_load_dwordx4 {v(b+4*nt,4)}, v2, s[12:15], s70 offen"] for nt in range(5)]

F1_FB = 80; F1_D = 5
def f1_wsetup(a):
    a("v_lshlrev_b32 v2, 4, v0")
    a("s_lshl_b32 s37, s31, 4")
    a("s_lshl_b32 s38, s3, 2")
    a("s_add_u32 s37, s37, s38")
    a("s_lshl_b32 s39, s37, 4")
    a(f"s_mul_i32 s37, s37, {20*1024}")
    srd(a, 12, 6, 112*20*1024, add=WS_WF1)
def f1_wl(s_):
    b = F1_FB + 16*(s_ % F1_D)
    return [[f"s_add_u32 s70, s37, {(nt*20 + s_)*1024}",
             f"buffer_load_dwordx4 {v(b+4*nt,4)}, v2, s[12:15], s70 offen"] for nt in range(4)]

def f1_phase(a, hook_after_main=None):
    NT = 4; NK = 20; D = F1_D
    vL16 = 2; vXa = 1
    a("v_lshrrev_b32 v3, 5, v0")
    a("v_lshlrev_b32 v3, 11, v3")
    a("v_lshrrev_b32 v4, 4, v0")
    a("v_and_b32 v4, 1, v4")
    a("v_lshl_add_u32 v3, v4, 9, v3")
    a("v_and_b32 v4, 15, v0")
    a(f"v_lshl_add_u32 {v(vXa)}, v4, 4, v3")
    a(f"v_add_u32 v3, 40960, {v(vXa)}")
    a(f"s_mul_i32 s36, s30, {2*40*1024}")
    a("s_lshl_b32 s40, s3, 10")
    srd(a, 8, 6, 64*40*1024, add=WS_HF)
    srd(a, 16, 6, 64*108*1024, add=WS_H1)
    srd(a, 20, 26, 1728*2)
    srd(a, 44, 6, 8*2048*8, add=WS_STAT)
    order = []
    ACC = 176; CS = 240
    XF = 160
    XF = 28
    ONE = 60
    ST = 12
    BI = 64
    BF = 12+0
    a("s_lshr_b32 s41, s3, 1")
    a("s_and_b32 s42, s3, 1")
    a(f"s_mul_i32 s42, s42, {40*1024}")
    a("s_lshl_b32 s41, s41, 10")
    a("s_add_u32 s41, s41, s42")
    a("s_add_u32 s41, s41, s36")
    def xdma(j):
        return [f"s_add_u32 m0, s40, {j*4096}",
                f"s_add_u32 s42, s41, {j*2048}",
                f"buffer_load_dwordx4 {v(vL16)}, s[8:11], s42 offen{SC} lds"]
    for c in range(4):
        for j in range(5*c, 5*c+5):
            for t in xdma(j): a(t)
        order += [f'xc{c}']*5
    a("s_lshl_b32 s41, s30, 6")
    a("v_add_u32 v5, s41, v0")
    a("v_lshlrev_b32 v5, 3, v5")
    for k in range(8):
        a(f"s_mov_b32 s42, {k*2048*8}")
        a(f"buffer_load_dwordx2 {v(ST+2*k,2)}, v5, s[44:47], s42 offen{SC}")
    a("v_lshrrev_b32 v6, 4, v0")
    a("v_lshlrev_b32 v6, 3, v6")
    a("s_lshl_b32 s42, s39, 1")
    for nt in range(NT):
        a(f"buffer_load_dwordx2 {v(BI+2*nt,2)}, v6, s[20:23], s42 offen offset:{nt*32}")
    order += ['st']*12
    a.vm = []
    for i in range(ACC, 256): a(f"v_mov_b32 {v(i)}, 0")
    for i in range(4): a(f"v_mov_b32 {v(ONE+i)}, 0x3f803f80")
    def wait_for(*tags):
        c = [i for i, t in enumerate(order) if t in tags]
        if not c: return
        a(f"s_waitcnt vmcnt({min(63, len(order) - 1 - max(c))})")
    def xreads(s_):
        b = XF + 16*(s_ % 2)
        base, off = (vXa, 0) if s_ < 10 else (3, 40960)
        return [f"ds_read_b128 {v(b+4*qt,4)}, {v(base)} offset:{s_*4096 - off + (qt//2)*1024 + (qt % 2)*256}" for qt in range(4)]
    wait_for('xc0')
    a("s_barrier")
    for t in xreads(0): a(t)
    for s_ in range(NK):
        b = F1_FB + 16*(s_ % D); xb = XF + 16*(s_ % 2)
        if (s_ + 1) % 5 == 0 and s_ + 1 < NK:
            wait_for(f'xc{(s_+1)//5}', f'w{s_}')
            a("s_barrier")
        else:
            wait_for(f'w{s_}')
        wl = f1_wl(s_ + D) if s_ + D < NK else [[]]*NT
        if s_ + D < NK: order += [f'w{s_+D}']*NT
        a.vm = []
        nx = xreads(s_+1) if s_ + 1 < NK else []
        for nt in range(NT):
            for qt in range(4):
                acc = v(ACC + (qt*NT+nt)*4, 4)
                a(MF16(acc, v(b+4*nt,4), v(xb+4*qt,4), acc))
            a(MF16(v(CS+4*nt,4), v(b+4*nt,4), v(ONE,4), v(CS+4*nt,4)))
            if nx: a(nx[nt])
            for t in wl[nt]: a(t)
        a.vm = []
        if s_ == 10:
            wait_for('st')
            for k in range(1, 8):
                a(f"v_add_f32 {v(ST)}, {v(ST)}, {v(ST+2*k)}")
                a(f"v_add_f32 {v(ST+1)}, {v(ST+1)}, {v(ST+2*k+1)}")
            a(f"v_mul_f32 v4, {f32hex(1/640.0)}, {v(ST)}")
            a(f"v_mul_f32 v5, {f32hex(1/640.0)}, {v(ST+1)}")
            a("v_fma_f32 v5, -v4, v4, v5")
            a("v_max_f32 v5, 0, v5")
            a(f"v_add_f32 v5, {f32hex(1e-5)}, v5")
            a("v_rsq_f32 v5, v5")
            a("s_nop 0")
            a("v_mul_f32 v4, v4, v5")
            a("v_sub_f32 v4, 0, v4")
            a("v_and_b32 v6, 15, v0")
            a("v_lshlrev_b32 v6, 2, v6")
            for qt in range(4):
                a(f"v_add_u32 v7, {64*qt}, v6")
                a(f"ds_bpermute_b32 {v(ST+2+2*qt)}, v7, v5")
                a(f"ds_bpermute_b32 {v(ST+3+2*qt)}, v7, v4")
            a("s_waitcnt lgkmcnt(0)")
    nb_s = 58
    a(f"s_mov_b32 s{nb_s}, s39")
    if hook_after_main: hook_after_main()
    c1 = -2.0*math.sqrt(2.0/math.pi)*math.log2(math.e); c2 = c1*0.044715
    a(f"v_mov_b32 v28, {f32hex(c1)}"); a(f"v_mov_b32 v29, {f32hex(c1)}")
    a(f"v_mov_b32 v30, {f32hex(c2)}"); a(f"v_mov_b32 v31, {f32hex(c2)}")
    a("v_mov_b32 v32, 1.0"); a("v_mov_b32 v33, 1.0")
    BF = 36
    for nt in range(NT):
        for j in range(2):
            a(f"v_lshlrev_b32 {v(BF+4*nt+2*j)}, 16, {v(BI+2*nt+j)}")
            a(f"v_and_b32 {v(BF+4*nt+2*j+1)}, 0xffff0000, {v(BI+2*nt+j)}")
    a("v_lshrrev_b32 v4, 4, v0")
    a("v_lshrrev_b32 v5, 1, v4")
    a("v_lshlrev_b32 v5, 9, v5")
    a("v_and_b32 v4, 1, v4")
    a("v_lshl_add_u32 v5, v4, 3, v5")
    a("v_and_b32 v4, 15, v0")
    a("v_lshl_add_u32 v5, v4, 4, v5")
    a(f"s_mul_i32 s41, s30, {2*108*1024}")
    a(f"s_lshl_b32 s42, s{nb_s}, 6")
    a("s_add_u32 s41, s41, s42")
    T = 52
    for qt in range(4):
        rs = ST + 2 + 2*qt; mb = ST + 3 + 2*qt
        for nt in range(NT):
            r = ACC + (qt*NT+nt)*4
            t_ = T + 8*((qt*NT+nt) % 3)
            for j in range(4): a(f"v_fma_f32 {v(t_+j)}, {v(mb)}, {v(CS+4*nt+j)}, {v(BF+4*nt+j)}")
            for j in range(4): a(f"v_fma_f32 {v(r+j)}, {v(rs)}, {v(r+j)}, {v(t_+j)}")
            for j in (0, 2): a(f"v_pk_mul_f32 {v(t_+j,2)}, {v(r+j,2)}, {v(r+j,2)}")
            for j in (0, 2): a(f"v_pk_fma_f32 {v(t_+j,2)}, {v(t_+j,2)}, v[30:31], v[28:29]")
            for j in (0, 2): a(f"v_pk_mul_f32 {v(t_+j,2)}, {v(t_+j,2)}, {v(r+j,2)}")
            for j in range(4): a(f"v_exp_f32 {v(t_+j)}, {v(t_+j)}")
            for j in (0, 2): a(f"v_pk_add_f32 {v(t_+j,2)}, {v(t_+j,2)}, v[32:33]")
            for j in range(4): a(f"v_rcp_f32 {v(t_+j)}, {v(t_+j)}")
            for j in (0, 2): a(f"v_pk_mul_f32 {v(t_+j,2)}, {v(t_+j,2)}, {v(r+j,2)}")
            a(f"v_cvt_pk_bf16_f32 {v(t_+4)}, {v(t_)}, {v(t_+1)}")
            a(f"v_cvt_pk_bf16_f32 {v(t_+5)}, {v(t_+2)}, {v(t_+3)}")
            lab = a.newlabel("F1_SK")
            a(f"s_add_u32 s42, s{nb_s}, {16*nt}")
            a("s_cmp_ge_u32 s42, 1728")
            a(f"s_cbranch_scc1 {lab}")
            a(f"s_add_u32 s42, s41, {(qt//2)*108*1024 + nt*1024}")
            a(f"buffer_store_dwordx2 {v(t_+4,2)}, v5, s[16:19], s42 offen offset:{(qt % 2)*256}{SC}")
            a.label(lab)

def gen_tail(a, name="kt_kernel"):
    U = name.upper()
    kernel_header(a, name)
    a("s_cmp_ge_u32 s2, 256")
    a(f"s_cbranch_scc1 {U}_END")
    a("s_load_dwordx2 s[6:7], s[0:1], 104")
    a("s_load_dwordx2 s[24:25], s[0:1], 0")
    a("s_load_dwordx2 s[26:27], s[0:1], 64")
    a("s_load_dwordx2 s[28:29], s[0:1], 80")
    a("s_load_dwordx4 s[60:63], s[0:1], 88")
    a("v_lshrrev_b32 v1, 6, v0")
    a(f"v_mov_b32 {v(vTid)}, v0")
    a("v_and_b32 v0, 63, v0")
    a("v_readfirstlane_b32 s3, v1")
    a("s_and_b32 s30, s2, 7")
    a("s_lshl_b32 s30, s30, 2")
    a("s_lshr_b32 s31, s2, 3")
    a("s_and_b32 s33, s31, 3")
    a("s_add_u32 s30, s30, s33")
    a("s_lshr_b32 s31, s2, 5")
    a("s_lshl_b32 s64, s30, 3")
    a("s_add_u32 s65, s64, 4")
    a("s_waitcnt lgkmcnt(0)")
    a("s_mov_b32 s48, s60"); a("s_mov_b32 s49, s61")
    srd(a, 52, 62, 256)
    def hook1():
        f1_wsetup(a)
        for s_ in range(F1_D):
            for g in f1_wl(s_):
                for t in g: a(t)
    wp_phase(a, 'oproj', hook_after_main=hook1)
    sync_group(a, 64, 8, "1")
    a("s_cmp_eq_u32 s31, 7")
    a(f"s_cbranch_scc1 {U}_SKIP2")
    def hook2():
        wp_wsetup(a, 'ffn2')
        for s_ in range(4):
            for g in wp_wl('ffn2', s_):
                for t in g: a(t)
    f1_phase(a, hook_after_main=hook2)
    sync_group(a, 65, 7, "2")
    a(f"s_branch {U}_P3")
    a.label(f"{U}_SKIP2")
    hook2()
    sync_group(a, 65, 7, "3", signal=False)
    a.label(f"{U}_P3")
    wp_phase(a, 'ffn2', prefetched=True)
    a.label(f"{U}_END")
    a("s_endpgm")
```

```python
import sys
from gen_common import *
from gen_k1 import gen_k1
from gen_k1b import gen_k1b
from gen_k1c import gen_k1c
from gen_k1d import gen_k1d
import os
from gen_k2 import gen_k2
from gen_k3 import gen_gemm160, gen_reduce
from gen_wp import gen_wp
from gen_k5 import gen_k5
from gen_tail import gen_tail

HEADER = open('sequential_preLN__compressed_kv_cla__dense_activation_gelu__prompt.s.ref').read().split('; Override')[0]

def build(kernels, path):
    a = Asm()
    launches = []
    kds = []
    for (fn, name, grid, block, lds, vg) in kernels:
        fn(a)
        a.lgkm = []; a.vm = []
        launches.append(f"; @launch kernel={name} grid=({grid},1,1) block=({block},1,1) lds={lds}")
        kds.append(kd(name, vg))
    errs = a.check_branches()
    assert errs == 0
    txt = HEADER + "\n".join(launches) + "\n" + '.amdgcn_target "amdgcn-amd-amdhsa--gfx950"\n.text\n' + a.text() + '.section .rodata,"a"\n' + "".join(kds)
    open(path, 'w').write(txt)

KS = [{'a': (gen_k1, "k1_kernel", 256, 512, 163840, 256), 'b': (gen_k1b, "k1_kernel", 256, 512, 147456, 256), 'c': (gen_k1c, "k1_kernel", 256, 512, 163840, 256), 'd': (gen_k1d, "k1_kernel", 256, 512, 147456, 256)}[os.environ.get('K1V', 'c')],
      (gen_k2, "k2_kernel", 256, 512, 163840, 256),
      ]
import os
if os.environ.get('TAIL', 'sep') == 'fused':
    KS += [(gen_tail, "kt_kernel", 256, 256, 86016, 256)]
else:
    KS += [(lambda a: gen_wp(a, "k3_kernel", 'oproj'), "k3_kernel", 256, 256, 90112, 256),
      (gen_k5, "k5_kernel", 224, 256, 81920, 256),
      (lambda a: gen_wp(a, "k6_kernel", 'ffn2'), "k6_kernel", 256, 256, 90112, 256)]
if __name__ == '__main__':
    build(KS, sys.argv[1] if len(sys.argv) > 1 else 'out.s')
```

```python
from gen_common import *

import os
FLAGS=os.environ.get('K1FLAGS','')
def gen_k1(a):
    name = "k1_kernel"
    kernel_header(a, name)
    a("s_cmp_ge_u32 s2, 256")
    a("s_cbranch_scc1 K1_END")
    a("s_load_dwordx2 s[4:5], s[0:1], 8")
    a("s_load_dwordx4 s[8:11], s[0:1], 24")
    a("s_load_dwordx2 s[6:7], s[0:1], 0")
    a("s_load_dwordx2 s[12:13], s[0:1], 104")
    a("v_lshrrev_b32 v1, 6, v0")
    a("v_and_b32 v0, 63, v0")
    a("v_readfirstlane_b32 s3, v1")
    a("s_and_b32 s36, s2, 7")
    a("s_lshr_b32 s37, s2, 3")
    a("s_and_b32 s37, s37, 3")
    a("s_lshl_b32 s37, s37, 3")
    a("s_add_u32 s36, s36, s37")
    a("s_lshr_b32 s37, s2, 5")
    a("s_lshr_b32 s38, s36, 4")
    a("s_and_b32 s43, s36, 15")
    a("s_lshr_b32 s39, s3, 2")
    a("s_and_b32 s40, s3, 3")
    a("s_lshl_b32 s41, s3, 11")
    a("s_waitcnt lgkmcnt(0)")
    srd(a, 16, 4, 2048*512*2)
    a("s_cmp_eq_u32 s38, 0")
    a("s_cselect_b32 s20, s8, s10")
    a("s_cselect_b32 s21, s9, s11")
    a("s_mov_b32 s22, %d" % (512*4096*2))
    a("s_mov_b32 s23, 0x00020000")
    a("s_mov_b32 s44, %d" % WS_KIMG)
    a("s_mov_b32 s45, %d" % WS_VIMG)
    a("s_cselect_b32 s44, s44, s45")
    a("s_add_u32 s24, s12, s44")
    a("s_addc_u32 s25, s13, 0")
    a("s_mov_b32 s26, 0x1000000")
    a("s_mov_b32 s27, 0x00020000")
    srd(a, 28, 6, 2048*640*2)
    srd(a, 32, 12, 64*40*1024, add=WS_XN)

    LN = 40
    vLNoff = 38
    a("v_lshrrev_b32 v2, 4, v0")
    a("v_and_b32 v3, 15, v0")
    a("s_lshl_b32 s45, s2, 3")
    a("s_lshl_b32 s46, s3, 2")
    a("s_add_u32 s45, s45, s46")
    a("v_add_u32 v37, s45, v2")
    a("s_movk_i32 s46, 1280")
    a("v_mul_lo_u32 v38, v37, s46")
    a("v_lshlrev_b32 v4, 4, v3")
    a("v_add_u32 v38, v38, v4")
    a("s_cmp_ge_u32 s3, 2")
    a("s_cbranch_scc1 K1_NOLN")
    for c in range(5):
        a(f"buffer_load_dwordx4 {v(LN+4*c,4)}, v38, s[28:31], 0 offen offset:{256*c}")
    a.label("K1_NOLN")
    a.vm = []

    vXd, vWd0, vWd1 = 5, 6, 7
    vXa0, vXa1, vWa0, vWa1 = 8, 9, 10, 11
    vSt = 12
    NR = 5 if 'nr4' not in FLAGS else 4
    XBASE, WBASE = 0, 16384
    SLOT = 32768
    a("v_lshrrev_b32 v2, 2, v0")
    a("s_lshl_b32 s45, s37, 8")
    a("s_lshl_b32 s46, s3, 5")
    a("s_add_u32 s45, s45, s46")
    a("v_add_u32 v2, s45, v2")
    a("v_lshlrev_b32 v2, 10, v2")
    a("v_and_b32 v3, 3, v0")
    a("v_lshrrev_b32 v4, 4, v0")
    a("v_xor_b32 v3, v3, v4")
    a("v_lshlrev_b32 v3, 4, v3")
    a(f"v_add_u32 {v(vXd)}, v2, v3")
    a("v_lshrrev_b32 v2, 5, v0")
    a("v_and_b32 v3, 31, v0")
    a("s_lshl_b32 s45, s3, 2")
    a("s_lshl_b32 s46, s43, 9")
    for i, dst in ((0, vWd0), (1, vWd1)):
        a(f"v_add_u32 v4, {2*i}, v2")
        a("v_add_u32 v13, s45, v4")
        a("v_lshlrev_b32 v13, 13, v13")
        a("v_lshlrev_b32 v4, 2, v4")
        a("v_xor_b32 v4, v4, v3")
        a("v_lshlrev_b32 v4, 4, v4")
        a("v_add_u32 v13, v13, v4")
        a(f"v_add_u32 {v(dst)}, s46, v13")
    a("v_and_b32 v2, 31, v0")
    swap23_v(a, 3, 2, 4)
    a("v_lshrrev_b32 v4, 2, v3")
    a("v_and_b32 v4, 3, v4")
    a("v_lshrrev_b32 v13, 5, v0")
    a("v_xor_b32 v4, v4, v13")
    a("v_lshlrev_b32 v4, 4, v4")
    a("v_lshlrev_b32 v3, 6, v3")
    a("v_add_u32 v3, v3, v4")
    a("s_lshl_b32 s45, s39, 13")
    a(f"v_add_u32 {v(vXa0)}, s45, v3")
    a(f"v_xor_b32 {v(vXa1)}, 32, {v(vXa0)}")
    a("v_and_b32 v2, 15, v0")
    a("v_lshrrev_b32 v3, 2, v2")
    a("v_and_b32 v4, 3, v2")
    a("v_lshrrev_b32 v13, 5, v0")
    a("v_lshlrev_b32 v13, 3, v13")
    a("v_add_u32 v13, v13, v3")
    a("v_lshlrev_b32 v13, 9, v13")
    a("v_lshrrev_b32 v14, 4, v0")
    a("v_and_b32 v14, 1, v14")
    a("v_lshlrev_b32 v14, 1, v14")
    a("v_and_b32 v15, 1, v4")
    a("v_add_u32 v14, v14, v15")
    a("s_lshl_b32 s45, s40, 3")
    a("v_add_u32 v14, s45, v14")
    a("v_lshlrev_b32 v3, 2, v3")
    a("v_xor_b32 v14, v14, v3")
    a("v_lshlrev_b32 v14, 4, v14")
    a("v_lshrrev_b32 v4, 1, v4")
    a("v_lshlrev_b32 v4, 3, v4")
    a("v_add3_u32 v13, v13, v14, v4")
    a(f"v_add_u32 {v(vWa0)}, {WBASE}, v13")
    a(f"v_xor_b32 {v(vWa1)}, 64, {v(vWa0)}")
    a(f"v_lshlrev_b32 {v(vSt)}, 4, v0")
    T1 = False
    T2 = 'touch2' in FLAGS
    if T2:
        a("s_load_dwordx2 s[48:49], s[0:1], 16")
        a("s_load_dwordx2 s[50:51], s[0:1], 40")
        a("s_load_dwordx2 s[52:53], s[0:1], 56")
        a("s_load_dwordx2 s[54:55], s[0:1], 72")
        a("s_lshl_b32 s45, s2, 3")
        a("s_add_u32 s45, s45, s3")
        a("s_waitcnt lgkmcnt(0)")
        a("s_mov_b32 s56, s48"); a("s_mov_b32 s57, s49"); a(f"s_mov_b32 s58, {640*4096*2}"); a("s_mov_b32 s46, s45")
        a("s_cmp_ge_u32 s45, 640")
        a("s_cselect_b32 s56, s50, s56"); a("s_cselect_b32 s57, s51, s57")
        a("s_cselect_b32 s47, 640, 0"); a("s_sub_u32 s46, s45, s47")
        a("s_cmp_ge_u32 s45, 1280")
        a("s_cselect_b32 s56, s52, s56"); a("s_cselect_b32 s57, s53, s57"); a(f"s_cselect_b32 s58, {640*1728*2}, s58")
        a("s_cselect_b32 s47, 640, 0"); a("s_sub_u32 s46, s46, s47")
        a("s_cmp_ge_u32 s45, 1550")
        a("s_cselect_b32 s56, s54, s56"); a("s_cselect_b32 s57, s55, s57")
        a("s_cselect_b32 s47, 270, 0"); a("s_sub_u32 s46, s46, s47")
        a("s_mov_b32 s59, 0x00020000")
        a("s_lshl_b32 s46, s46, 13")
        a("s_mov_b32 s60, s46")
        a("v_lshlrev_b32 v33, 7, v0")
    ACC = 128
    for i in range(128):
        a(f"v_mov_b32 {v(ACC+i)}, 0")
    XF = [64, 80]
    WF = [96, 104]

    ROT = 'rot' in FLAGS.split(',')
    if ROT:
        a("s_lshl_b32 s61, s37, 1")
        a("s_lshr_b32 s62, s36, 3")
        a("s_lshl_b32 s62, s62, 2")
        a("s_add_u32 s61, s61, s62")
    def dma(it):
        st = it % NR
        out = []
        if ROT:
            pre = [f"s_add_u32 s63, s61, {it}", "s_and_b32 s63, s63, 15", "s_lshl_b32 s64, s63, 6", "s_lshl_b32 s65, s63, 18"]
            out.append(pre)
        for i in range(0 if ('wonly' in FLAGS or 'nodma' in FLAGS) else 2):
            out.append([f"s_add_u32 m0, s41, {XBASE + st*SLOT + i*1024}",
                        (f"s_add_u32 s47, s64, {i*16384}" if ROT else f"s_mov_b32 s47, {it*64 + i*16384}"),
                        f"buffer_load_dwordx4 {v(vXd)}, s[16:19], s47 offen lds"])
        for i in range(0 if ('xonly' in FLAGS or 'nodma' in FLAGS) else 2):
            out.append([f"s_add_u32 m0, s41, {WBASE + st*SLOT + i*1024}",
                        (f"s_mov_b32 s47, s65" if ROT else f"s_mov_b32 s47, {it*32*8192}"),
                        f"buffer_load_dwordx4 {v(vWd0 if i == 0 else vWd1)}, s[20:23], s47 offen lds"])
        return out
    WIN = {}
    for wdw in range(1, (NR+1)//2):
        regs = [16 + 4*(wdw-1) + k for k in range(4)]
        for k, src in enumerate((vXa0, vXa1, vWa0, vWa1)):
            a(f"v_add_u32 {v(regs[k])}, {wdw*65536}, {v(src)}")
        WIN[wdw] = regs
    WIN[0] = [vXa0, vXa1, vWa0, vWa1]
    def reads(it, sstep, fs):
        st = it % NR
        R = WIN[st//2]; so = (st % 2)*SLOT
        out = []
        for nb in range(2):
            for u in range(2):
                out.append(f"ds_read_b64_tr_b16 {v(WF[fs]+4*nb+2*u,2)}, {v(R[2+nb])} offset:{so + (16*sstep+4*u)*512}")
        for kb in range(4):
            out.append(f"ds_read_b128 {v(XF[fs]+4*kb,4)}, {v(R[sstep])} offset:{so + kb*2048}")
        return out
    def mfmas(fs, vtype):
        out = []
        for kb in range(4):
            for nb in range(2):
                acc = v(ACC + (kb*2+nb)*16, 16)
                w = v(WF[fs]+4*nb, 4); x = v(XF[fs]+4*kb, 4)
                if 'm16' in FLAGS:
                    for hh in range(2):
                        a4 = v(ACC + (kb*2+nb)*16 + 4*hh + 8*fs, 4)
                        out.append(f"v_mfma_f32_16x16x32_bf16 {a4}, {w}, {x}, {a4}")
                elif vtype == 0: out.append(f"v_mfma_f32_32x32x16_bf16 {acc}, {w}, {x}, {acc}")
                else:          out.append(f"v_mfma_f32_32x32x16_bf16 {acc}, {x}, {w}, {acc}")
        return out

    NIT = 16
    if T2: a("buffer_load_dword v36, v33, s[56:59], s60 offen")
    LA = NR - 1
    for it in range(LA):
        for grp in dma(it):
            for t in grp: a(t)
    if T1:
        a("s_lshr_b32 s45, s36, 3")
        a("s_lshl_b32 s45, s45, 6")
        a("s_lshl_b32 s46, s37, 8")
        a("s_add_u32 s45, s45, s46")
        a("s_lshl_b32 s45, s45, 10")
        a("s_lshl_b32 s46, s3, 13")
        a("s_add_u32 s45, s45, s46")
        a("v_lshlrev_b32 v2, 7, v0")
        a("buffer_load_dword v35, v2, s[16:19], s45 offen")
        a("s_lshl_b32 s46, s3, 6")
        a("v_add_u32 v2, s46, v0")
        a("v_lshrrev_b32 v4, 2, v2")
        a("v_lshlrev_b32 v4, 13, v4")
        a("v_and_b32 v2, 3, v2")
        a("v_lshl_add_u32 v4, v2, 7, v4")
        a("s_lshl_b32 s45, s37, 19")
        a("s_lshl_b32 s46, s43, 9")
        a("s_add_u32 s45, s45, s46")
        a("s_cmp_ge_u32 s3, 4")
        a("s_cselect_b32 s45, 0x7f000000, s45")
        a("buffer_load_dword v34, v4, s[20:23], s45 offen")
    a.vm = []
    PER = 2 if 'only' in FLAGS else 4
    a(f"s_waitcnt vmcnt({(LA-1)*PER})")
    a("s_barrier")
    for t in reads(0, 0, 0): a(t)
    a("s_cmp_eq_u32 s38, 0")
    a("s_cbranch_scc0 K1_VTYPE")
    snap = a.snapshot()
    for vtype in range(2):
        if vtype == 1:
            a.label("K1_VTYPE"); a.restore(snap)
        for it in range(NIT):
            if it <= NIT-2:
                last = min(it + LA - 1, NIT - 1)
                a(f"s_waitcnt vmcnt({(last - (it+1))*PER})")
            if it <= NIT-2: a("s_barrier")
            fill = []
            if it + LA < NIT:
                for grp in dma(it+LA): fill += grp

            a.vm = []
            r1 = reads(it, 1, 1)
            mm0 = mfmas(0, vtype); mm1 = mfmas(1, vtype)
            if 'nomfma' in FLAGS: mm0 = mm0[:1]; mm1 = mm1[:1]
            if 'nolds' in FLAGS: r1 = []
            interleave(a, mm0, r1 + fill, lead=2)
            r0 = reads(it+1, 0, 0) if it + 1 < NIT else []
            if 'nolds' in FLAGS: r0 = []
            interleave(a, mm1, r0, lead=0)
            a.vm = []
        a("s_lshl_b32 s45, s43, 1")
        a("s_lshr_b32 s46, s40, 1")
        a("s_add_u32 s45, s45, s46")
        a("s_lshl_b32 s45, s45, 19")
        a("s_lshl_b32 s46, s37, 3")
        a("s_lshl_b32 s47, s39, 2")
        a("s_add_u32 s46, s46, s47")
        a("s_lshl_b32 s46, s46, 13")
        a("s_add_u32 s45, s45, s46")
        a("s_and_b32 s46, s40, 1")
        a("s_lshl_b32 s46, s46, 12")
        a("s_add_u32 s45, s45, s46")
        T = 64
        cnt = 0
        for kb in range(4):
            a(f"s_add_u32 s46, s45, {kb*8192}")
            for nb in range(2):
                for t in range(2):
                    r = ACC + (kb*2+nb)*16 + 8*t
                    d = T + 4*(cnt % 8); cnt += 1
                    for j in range(4):
                        a(f"v_cvt_pk_bf16_f32 {v(d+j)}, {v(r+2*j)}, {v(r+2*j+1)}")
                    if 'nostore' not in FLAGS or (kb==0 and nb==0 and t==0): a(f"buffer_store_dwordx4 {v(d,4)}, {v(vSt)}, s[24:27], s46 offen offset:{(2*nb+t)*1024}" + (" nt" if 'nt' in FLAGS.split(',') else "") + (" sc1" if 'sc1' in FLAGS.split(',') else "") + (" sc0" if 'sc0' in FLAGS.split(',') else ""))
        a.vm = []
        if vtype == 0: a("s_branch K1_LN")
    a.label("K1_LN")
    a("s_cmp_ge_u32 s3, 2")
    a("s_cbranch_scc1 K1_END")
    a("s_waitcnt vmcnt(16)")
    emit_ln(a, data=LN, f32=64, n8=5, srd_out=32, rowreg=37, lane=0, frag_ks_stride=40, tmp=2)
    a.label("K1_END")
    a("s_endpgm")

def dpp_allreduce16(a, r, t):
    for sh in (8, 4, 2, 1):
        a(f"v_add_f32_dpp {v(t)}, {v(r)}, {v(r)} row_ror:{sh} row_mask:0xf bank_mask:0xf")
        a(f"v_mov_b32 {v(r)}, {v(t)}")

def emit_ln(a, data, f32, n8, srd_out, rowreg, lane, frag_ks_stride, tmp, packed_in=True):
    N = 8*n8
    if packed_in:
        for i in range(4*n8):
            a(f"v_lshlrev_b32 {v(f32+2*i)}, 16, {v(data+i)}")
            a(f"v_and_b32 {v(f32+2*i+1)}, 0xffff0000, {v(data+i)}")
    S, T1 = tmp, tmp+1
    a(f"v_add_f32 {v(S)}, {v(f32)}, {v(f32+1)}")
    for i in range(2, N):
        a(f"v_add_f32 {v(S)}, {v(S)}, {v(f32+i)}")
    dpp_allreduce16(a, S, T1)
    a(f"v_mul_f32 {v(S)}, {f32hex(1.0/640.0)}, {v(S)}")
    for i in range(N):
        a(f"v_sub_f32 {v(f32+i)}, {v(f32+i)}, {v(S)}")
    a(f"v_mul_f32 {v(S)}, {v(f32)}, {v(f32)}")
    for i in range(1, N):
        a(f"v_fmac_f32 {v(S)}, {v(f32+i)}, {v(f32+i)}")
    dpp_allreduce16(a, S, T1)
    a(f"v_mov_b32 {v(T1)}, {f32hex(1e-5)}")
    a(f"v_fmac_f32 {v(T1)}, {f32hex(1.0/640.0)}, {v(S)}")
    a(f"v_rsq_f32 {v(S)}, {v(T1)}")
    for i in range(N):
        a(f"v_mul_f32 {v(f32+i)}, {v(f32+i)}, {v(S)}")
    A, B = tmp, tmp+1
    a(f"v_lshrrev_b32 {v(A)}, 5, {v(rowreg)}")
    a(f"s_mov_b32 s46, {frag_ks_stride*1024}")
    a(f"v_mul_lo_u32 {v(A)}, {v(A)}, s46")
    a(f"v_and_b32 {v(B)}, 31, {v(rowreg)}")
    a(f"v_lshl_add_u32 {v(A)}, {v(B)}, 4, {v(A)}")
    a(f"v_and_b32 {v(B)}, 15, {v(lane)}")
    a(f"v_lshrrev_b32 {v(B)}, 1, {v(B)}")
    a(f"v_lshl_add_u32 {v(A)}, {v(B)}, 10, {v(A)}")
    a(f"v_and_b32 {v(B)}, 1, {v(lane)}")
    a(f"v_lshl_add_u32 {v(A)}, {v(B)}, 9, {v(A)}")
    for c in range(n8):
        for j in range(4):
            a(f"v_cvt_pk_bf16_f32 {v(data+4*c+j)}, {v(f32+8*c+2*j)}, {v(f32+8*c+2*j+1)}")
        a(f"s_mov_b32 s46, {c*8192}")
        a(f"buffer_store_dwordx4 {v(data+4*c,4)}, {v(A)}, {s(srd_out,4)}, s46 offen")
```

```python
from gen_common import *
import math, os
from gen_wp import emit_relayout_issue, emit_relayout_finish
FLAGS = os.environ.get('K2FLAGS', '') + ',rdefer'

KBASE = 0
VBASE = 49152
SCR = 114688
WRING = 98304

O_ = 192; QA = 160; QB = 128; S_ = [96, 112]; P_ = [80, 88]; POOL = 48; TMP = 32; NEGM = 16
vL16 = 1; vKa = 2; vVa = 3; vL = [6, 7]; vZb = 8; vZ = 9; vDma = 10; vT0 = 11; vT1 = 12; vT2 = 13; vSt = 14; vNeg = 15
vWa = [4, 5, 8, 9]; vWd = 10
LOOK = int(os.environ.get('K2LOOK', '4'))

import re as _re
def MF(d, a_, b_, c_):
    if 'm16' in FLAGS:
        d0 = int(_re.match(r"v\[(\d+):", d).group(1)); c0 = int(_re.match(r"v\[(\d+):", c_).group(1))
        return [f"v_mfma_f32_16x16x32_bf16 v[{d0+4*k}:{d0+4*k+3}], {a_}, {b_}, v[{c0+4*k}:{c0+4*k+3}]" for k in (0, 2)]
    return f"v_mfma_f32_32x32x16_bf16 {d}, {a_}, {b_}, {c_}"

def gen_k2(a):
    STAMP = 'stamp' in FLAGS
    def stamp(i):
        if not STAMP: return
        a("s_memtime s[50:51]")
        a("s_waitcnt lgkmcnt(0)")
        a("v_mov_b32 v11, s50")
        a(f"s_add_u32 s52, s53, {i*4}")
        a("buffer_store_dword v11, off, s[56:59], s52")
        a.vm = []
    name = "k2_kernel"
    kernel_header(a, name)
    a("s_cmp_ge_u32 s2, 256")
    a("s_cbranch_scc1 K2_END")
    a("s_load_dwordx2 s[42:43], s[0:1], 16")
    a("s_load_dwordx2 s[44:45], s[0:1], 104")
    a("s_load_dwordx2 s[80:81], s[0:1], 40")
    a("s_load_dwordx2 s[82:83], s[0:1], 72")
    a("s_load_dwordx2 s[84:85], s[0:1], 56")
    a("v_lshrrev_b32 v1, 6, v0")
    a("v_and_b32 v0, 63, v0")
    a("v_readfirstlane_b32 s3, v1")
    a("s_lshr_b32 s4, s3, 2")
    a("s_and_b32 s5, s3, 3")
    a("s_and_b32 s6, s2, 7")
    a("s_lshl_b32 s6, s6, 2")
    a("s_lshr_b32 s7, s2, 3")
    a("s_and_b32 s46, s7, 3")
    a("s_add_u32 s6, s6, s46")
    a("s_lshr_b32 s7, s2, 5")
    a("s_lshl_b32 s40, s3, 11")
    CSC = math.log2(math.e)/math.sqrt(128.0)
    a(f"s_mov_b32 s36, {f32hex(CSC)}")
    a(f"s_mov_b32 s37, {f32hex(2.0**60)}")
    a("s_waitcnt lgkmcnt(0)")
    srd(a, 8, 44, 64*40*1024, add=WS_XN)
    srd(a, 12, 42, 640*4096*2)
    srd(a, 16, 44, 0x1000000, add=WS_KIMG)
    srd(a, 20, 44, 0x1000000, add=WS_VIMG)
    srd(a, 24, 44, 0x1000000, add=WS_CTX)
    if STAMP:
        a("s_load_dwordx2 s[54:55], s[0:1], 96")
        a("s_waitcnt lgkmcnt(0)")
        srd(a, 56, 54, 256)
        a("s_lshl_b32 s53, s3, 5")
        a("s_cmp_eq_u32 s2, 224")
        a("s_cselect_b32 s53, s53, 4096")
    stamp(0)
    a(f"v_lshlrev_b32 {v(vL16)}, 4, v0")
    a("s_sub_u32 s47, 15, s7")
    a("s_cmp_eq_u32 s4, 0")
    a("s_cselect_b32 s46, s47, s7")
    a("s_lshl_b32 s46, s46, 2")
    a("s_add_u32 s46, s46, s5")
    a("s_mul_i32 s46, s46, 40960")
    a("v_lshrrev_b32 v11, 4, v0")
    a("v_and_b32 v12, 15, v0")
    a("v_lshlrev_b32 v13, 2, v11")
    a("v_xor_b32 v12, v12, v13")
    a("v_lshlrev_b32 v12, 4, v12")
    a("s_lshl_b32 s47, s3, 3")
    a("v_add_u32 v11, s47, v11")
    a("v_lshlrev_b32 v11, 13, v11")
    a("s_lshl_b32 s47, s6, 8")
    a(f"v_add3_u32 {v(vWd)}, v11, v12, s47")
    a("v_and_b32 v11, 15, v0")
    a("v_lshrrev_b32 v12, 2, v11")
    a("v_and_b32 v13, 3, v11")
    a("v_lshrrev_b32 v14, 5, v0")
    a("v_lshlrev_b32 v14, 3, v14")
    a("v_add_u32 v14, v14, v12")
    a("v_lshlrev_b32 v14, 8, v14")
    a("v_lshrrev_b32 v15, 4, v0")
    a("v_and_b32 v15, 1, v15")
    a("v_lshlrev_b32 v15, 1, v15")
    a("v_and_b32 v11, 1, v13")
    a("v_add_u32 v15, v15, v11")
    a("v_lshlrev_b32 v12, 2, v12")
    a("v_xor_b32 v15, v15, v12")
    a("v_lshlrev_b32 v15, 4, v15")
    a("v_lshrrev_b32 v13, 1, v13")
    a("v_lshlrev_b32 v13, 3, v13")
    a(f"v_add3_u32 v14, v14, v15, v13")
    a(f"v_add_u32 {v(vWa[0])}, {WRING}, v14")
    for db in range(1, 4):
        a(f"v_xor_b32 {v(vWa[db])}, {db*64}, {v(vWa[0])}")
    ACC = O_
    XB = 96
    WF = [32, 48]
    NST = 10
    def wdma(st):
        out = []
        for i in range(2):
            out += [f"s_add_u32 m0, s40, {WRING + (st % 4)*16384 + i*1024}",
                    f"s_mov_b32 s47, {st*64*8192 + i*4*8192}",
                    f"buffer_load_dwordx4 {v(vWd)}, s[12:15], s47 offen lds"]
        return out
    def xload(ks):
        return [f"s_add_u32 s47, s46, {ks*1024}",
                f"buffer_load_dwordx4 {v(XB + 4*(ks % 8), 4)}, {v(vL16)}, s[8:11], s47 offen"]
    def wreads(ks, fs):
        st, ss = divmod(ks, 4)
        out = []
        for db in range(4):
            for u in range(2):
                out.append(f"ds_read_b64_tr_b16 {v(WF[fs]+4*db+2*u,2)}, {v(vWa[db])} offset:{(st % 4)*16384 + (16*ss+4*u)*256}")
        return out
    for st in range(3):
        for t in wdma(st): a(t)
    a.vm = []
    for ks in range(7):
        for t in xload(ks): a(t)
    order = ['d0']*2 + ['d1']*2 + ['d2']*2 + [f'x{k}' for k in range(7)]
    a("s_lshl_b32 s61, s2, 3")
    a("s_add_u32 s61, s61, s3")
    a("s_mul_i32 s62, s3, 5120")
    a(f"s_add_u32 s62, s62, {SCR}")
    for i in range(64): a(f"v_mov_b32 {v(ACC+i)}, 0")
    vKVd = 15
    a(f"v_add_u32 {v(vKVd)}, s40, {v(vL16)}")
    a("s_lshl_b32 s48, s6, 19")
    def dmaK(vd, wrap=True):
        o = [["s_add_u32 m0, s32, s40", "s_add_u32 s32, s32, 16384",
                f"buffer_load_dwordx4 {v(vd)}, s[16:19], s34 offen lds"],
                [f"buffer_load_dwordx4 {v(vd)}, s[16:19], s34 offen offset:1024 lds",
                "s_add_u32 s34, s34, 16384"],
                [f"s_cmp_eq_u32 s32, {KBASE+49152}",
                f"s_cselect_b32 s32, {KBASE}, s32"]]
        if wrap: o += [["s_cmp_eq_u32 s34, s63", "s_cselect_b32 s34, s48, s34"]]
        return o
    def dmaV(vd, wrap=True):
        o = [["s_add_u32 m0, s33, s40", "s_add_u32 s33, s33, 16384",
                f"buffer_load_dwordx4 {v(vd)}, s[20:23], s35 offen lds"],
                [f"buffer_load_dwordx4 {v(vd)}, s[20:23], s35 offen offset:1024 lds",
                "s_add_u32 s35, s35, 16384"],
                [f"s_cmp_eq_u32 s33, {VBASE+65536}",
                f"s_cselect_b32 s33, {VBASE}, s33"]]
        if wrap: o += [["s_cmp_eq_u32 s35, s63", "s_cselect_b32 s35, s48, s35"]]
        return o
    a(f"s_mov_b32 s32, {KBASE}")
    a(f"s_mov_b32 s33, {VBASE}")
    a("s_mov_b32 s34, s48")
    a("s_mov_b32 s35, s48")
    def wait_for(tag):
        idx = max(i for i, t in enumerate(order) if t == tag)
        n = len(order) - 1 - idx
        a(f"s_waitcnt vmcnt({n})")
    wait_for('d0')
    a("s_barrier")
    for t in wreads(0, 0): a(t)
    for st in range(NST):
        if st + 1 < NST:
            wait_for(f'd{st+1}')
            a("s_barrier")
        fill0 = []
        if st + 3 < NST:
            fill0 = wdma(st + 3)
        for ss in range(4):
            ks = st*4 + ss
            fs = ks % 2
            mm = [MF(v(ACC+16*db,16), v(WF[fs]+4*db,4), v(XB+4*(ks % 8),4), v(ACC+16*db,16)) for db in range(4)]
            wait_for(f'x{ks}')
            fill = []
            if ss == 0 and fill0:
                fill += fill0; order += [f'd{st+3}']*2
            if st == 7 and ss == 1:
                fill += [x for g_ in (dmaK(vKVd, False) + dmaK(vKVd, False) + dmaV(vKVd, False)) for x in g_]; order += ['kv']*6
            if ks + 1 < NST*4: fill += wreads(ks+1, 1-fs)
            if ks + 7 < NST*4:
                fill += xload(ks+7); order.append(f'x{ks+7}')
            a.vm = []
            interleave(a, mm, fill)
            a.vm = []
    stamp(1)
    a("s_barrier")
    for db in range(4):
        for r in range(16):
            a(f"v_mul_f32 {v(ACC+16*db+r)}, s36, {v(ACC+16*db+r)}")
    for db in range(4):
        for t in range(2):
            for j in range(4):
                r = ACC + 16*db + 8*t + 2*j
                a(f"v_cvt_pk_bf16_f32 {v(QA + 4*(2*db+t) + j)}, {v(r)}, {v(r+1)}")
    a("s_lshl_b32 s46, s3, 13")
    a(f"s_add_u32 s46, s46, {WRING}")
    a(f"v_add_u32 {v(vT0)}, s46, {v(vL16)}")
    for f in range(8):
        a(f"ds_write_b128 {v(vT0)}, {v(QA+4*f,4)} offset:{f*1024}")
    a("s_waitcnt lgkmcnt(0)")
    a("s_barrier")
    a("s_lshl_b32 s46, s5, 13")
    a(f"s_add_u32 s46, s46, {WRING}")
    a(f"v_add_u32 {v(vT0)}, s46, {v(vL16)}")
    for f in range(8):
        a(f"ds_read_b128 {v(QA+4*f,4)}, {v(vT0)} offset:{f*1024}")
        a(f"ds_read_b128 {v(QB+4*f,4)}, {v(vT0)} offset:{32768 + f*1024}")
    a(f"v_mov_b32 {v(vDma)}, {v(vKVd)}")
    a(f"v_lshrrev_b32 {v(vT2)}, 5, v0")
    a(f"v_and_b32 {v(vT1)}, 31, v0")
    a(f"v_lshlrev_b32 {v(vT2)}, 3, {v(vT2)}")
    a(f"v_sub_u32 {v(vT1)}, {v(vT1)}, {v(vT2)}")
    a("s_sub_u32 s46, s5, s4")
    a("s_lshl_b32 s46, s46, 5")
    a(f"v_add_u32 {v(vNeg)}, s46, {v(vT1)}")
    a("s_lshl_b32 s41, s4, 13")
    a(f"v_add_u32 {v(vSt)}, s41, {v(vL16)}")
    a("s_mov_b32 s39, 0")
    a("s_sub_u32 s38, 15, s7")
    a(f"s_mov_b32 s30, {KBASE}")
    a(f"s_mov_b32 s31, {VBASE}")
    a(f"v_mov_b32 {v(vT2)}, 0xff800000")
    a(f"v_mov_b32 {v(vT1)}, s37")
    a("s_waitcnt vmcnt(0) lgkmcnt(0)")
    a("s_barrier")
    a.vm = []
    if 'rearly' in FLAGS: emit_relayout_issue(a, 61, 62, 32, 64)
    a.vm = []
    if 'prio' in FLAGS:
        a("s_cmp_eq_u32 s4, 0")
        a("s_cbranch_scc1 K2_NOPRIO")
        a("s_setprio 1")
        a.label("K2_NOPRIO")
    stamp(2)
    a.label("K2_BLOCK")
    a("s_lshl_b32 s28, s38, 1")
    a("s_add_u32 s28, s28, 2")
    a("s_lshl_b32 s63, s28, 14")
    a("s_add_u32 s63, s63, s48")
    a("s_lshl_b32 s46, s38, 7")
    a(f"v_add_u32 {v(vZb)}, s46, {v(vNeg)}")
    for i in range(64): a(f"v_mov_b32 {v(O_+i)}, 0")
    for i in range(16): a(f"v_mov_b32 {v(NEGM+i)}, 0")
    a(f"v_mov_b32 {v(vL[0])}, 0")
    a(f"v_mov_b32 {v(vL[1])}, 0")
    a("s_mov_b32 s29, 0")
    def adv_k():
        return ["s_add_u32 s30, s30, 16384", f"s_cmp_eq_u32 s30, {KBASE+49152}", f"s_cselect_b32 s30, {KBASE}, s30"]
    def adv_v():
        return ["s_add_u32 s31, s31, 16384", f"s_cmp_eq_u32 s31, {VBASE+65536}", f"s_cselect_b32 s31, {VBASE}, s31"]

    slowsites = []
    def iteration(par, do_pv, do_qk, sm, masked, next_pv, pre, wait=4, dma=True, first=False):
        if wait == 'dyn9':
            l9 = a.newlabel("K2_W9"); ld = a.newlabel("K2_WD")
            a("s_cmp_eq_u32 s39, 0")
            a(f"s_cbranch_scc1 {l9}")
            a("s_waitcnt vmcnt(4)")
            a(f"s_branch {ld}")
            a.label(l9)
            a("s_waitcnt vmcnt(9)")
            a.label(ld)
        elif wait is not None: a(f"s_waitcnt vmcnt({wait})")
        a("s_barrier")
        frags = []
        if do_pv:
            for t in range(2):
                for db in range(4):
                    frags.append(('V', db, t))
        if do_qk:
            for s_ in range(8): frags.append(('K', s_))
        nf = len(frags)
        def rd(k, nxt=False):
            f = ('V', k % 4, k // 4) if nxt else frags[k]
            buf = POOL + 4*(k % 8)
            if f[0] == 'V': return f"ds_read_b128 {v(buf,4)}, {v(vVa)} offset:{(f[1]*2+f[2])*1024}"
            return f"ds_read_b128 {v(buf,4)}, {v(vKa)} offset:{f[1]*1024}"
        def mf(k):
            f = frags[k]; buf = v(POOL + 4*(k % 8), 4)
            if f[0] == 'V':
                return MF(v(O_+16*f[1],16), buf, v(P_[1-par]+4*f[2],4), v(O_+16*f[1],16))
            sreg = v(S_[1-par],16)
            return MF(sreg, buf, v(QA+4*f[1],4), v(NEGM,16) if f[1] == 0 else sreg)
        head = []
        if do_qk:
            head.append(f"v_add_u32 {v(vKa)}, s30, {v(vSt)}")
            head += adv_k()
        for t in head: a(t)
        if not pre:
            for k in range(min(LOOK, nf)): a(rd(k))
        dm = (dmaK(vDma) + dmaV(vDma)) if dma else []
        val = []
        S = S_[par]; T = TMP; lo, ln = vL[1-par], vL[par]
        if sm:
            if masked:
                val.append(f"v_subrev_u32 {v(vZ)}, s29, {v(vZb)}")
                for r in range(16):
                    base = 16*(r//8) + (r % 8)
                    val.append(f"v_cmp_le_i32 vcc, {base}, {v(vZ)}")
                    val.append(f"v_cndmask_b32 {v(S+r)}, {v(vT2)}, {v(S+r)}, vcc")
            seq = []
            for r in range(16 + 2 if not first else 0):
                if r < 16: seq.append(f"v_exp_f32 {v(T+r)}, {v(S+r)}")
                if 0 <= r-2 < 16:
                    q = r-2
                    seq.append(f"v_add_f32 {v(ln)}, {v(lo if q == 0 else ln)}, {v(T+q)}")
                    if q % 2 == 1: seq.append(f"v_cvt_pk_bf16_f32 {v(P_[par]+q//2)}, {v(T+q-1)}, {v(T+q)}")
            val += seq
        fillers = [[] for _ in range(max(nf, 1))]
        for k in range(nf):
            kk = k + LOOK
            if kk < nf:
                fillers[k].append(rd(kk))
            elif next_pv:
                if kk == nf:
                    fillers[k].append(f"v_add_u32 {v(vVa)}, s31, {v(vSt)}")
                    fillers[k] += adv_v()
                fillers[k].append(rd(kk - nf, nxt=True))
        for i, t in enumerate(dm): fillers[min(i, nf-1)] += t
        nv = len(val)
        di = 0
        for k in range(nf):
            want = (nv * (k+1)) // nf
            fillers[k] += val[di:want]; di = want
        for k in range(nf):
            a(mf(k))
            for t in fillers[k]: a(t)
        a.vm = []
        if sm:
            a("s_add_u32 s29, s29, 64")
            lab = a.newlabel("K2_SLOW"); ret = a.newlabel("K2_RET")
            if first:
                a(f"s_branch {lab}")
            else:
                a(f"v_cmp_nle_f32 vcc, {v(ln)}, {v(vT1)}")
                a(f"s_cbranch_vccnz {lab}")
            a.label(ret)
            slowsites.append((lab, ret, par, a.snapshot(), do_qk, first))

    iteration(1, False, True, False, False, False, False, wait=None)
    iteration(0, False, True, True, True, True, False, wait=None, first=True)
    a("s_waitcnt vmcnt(4)")
    a("s_cmp_eq_u32 s28, 2")
    a("s_cbranch_scc1 K2_E")
    a("s_sub_u32 s49, s28, 4")
    a("s_lshr_b32 s49, s49, 1")
    snap = a.snapshot()
    a("s_cmp_eq_u32 s49, 0")
    a("s_cbranch_scc1 K2_C3")
    a.label("K2_LOOP")
    iteration(1, True, True, True, False, True, True)
    iteration(0, True, True, True, False, True, True)
    a("s_sub_u32 s49, s49, 1")
    a("s_cmp_lg_u32 s49, 0")
    a("s_cbranch_scc1 K2_LOOP")
    assert a.snapshot() == snap, (a.snapshot(), snap)
    a.label("K2_C3")
    iteration(1, True, True, True, False, True, True)
    RL = 'norl' not in FLAGS and 'rearly' not in FLAGS
    if RL:
        a.vm = []
        emit_relayout_issue(a, 61, 62, 32, 64)
        a.vm = []
    iteration(0, True, True, True, True, True, True, wait=9 if RL else 4)
    assert a.snapshot() == snap
    a.label("K2_E")
    iteration(1, True, False, True, True, True, True, dma=False, wait=9 if RL else 4)
    a("s_waitcnt vmcnt(0)")
    a("s_cmp_lg_u32 s39, 0" if 'norl' not in FLAGS else "s_cmp_lg_u32 s39, 7")
    a("s_cbranch_scc1 K2_NORL")
    snapr = a.snapshot()
    sv = a.vm; a.vm = []
    emit_relayout_finish(a, 62, 100, 104, 64)
    a("s_waitcnt lgkmcnt(4)")
    a.vm = []
    a.lgkm = [set(x) for x in snapr[0]]
    a.label("K2_NORL")
    iteration(0, True, False, False, False, False, True, wait=None, dma=False)
    if STAMP:
        a("s_lshl_b32 s60, s39, 3")
        a("s_add_u32 s53, s53, s60")
    stamp(3)
    lf = vL[1]
    a(f"v_mov_b32 {v(vT0)}, {v(lf)}")
    a("s_nop 1")
    a(f"v_permlane32_swap_b32 {v(lf)}, {v(vT0)}")
    a(f"v_add_f32 {v(lf)}, {v(lf)}, {v(vT0)}")
    a("s_mul_i32 s46, s3, 4608")
    a(f"s_add_u32 s46, s46, {SCR}")
    a(f"v_add_u32 {v(vT0)}, s46, {v(vL16)}")
    a(f"v_lshrrev_b32 {v(vZ)}, 2, {v(vL16)}")
    a(f"v_add_u32 {v(vZ)}, s46, {v(vZ)}")
    a("s_xor_b32 s46, s3, 4")
    a("s_mul_i32 s46, s46, 4608")
    a(f"s_add_u32 s46, s46, {SCR}")
    vR0, vR1 = 96, 97
    a(f"v_add_u32 {v(vR0)}, s46, {v(vL16)}")
    a(f"v_lshrrev_b32 {v(vR1)}, 2, {v(vL16)}")
    a(f"v_add_u32 {v(vR1)}, s46, {v(vR1)}")
    R = 32
    mo, lo_ = 64, 65
    a(f"ds_write_b32 {v(vZ)}, {v(NEGM)} offset:4096")
    a(f"ds_write_b32 {v(vZ)}, {v(lf)} offset:4352")
    a("s_cmp_eq_u32 s4, 0")
    a("s_cbranch_scc0 K2_MRG1")
    snap2 = a.snapshot()
    for variant in range(2):
        if variant == 1:
            a.label("K2_MRG1"); a.restore(snap2)
        src = O_ + (32 if variant == 0 else 0)
        own = O_ + (0 if variant == 0 else 32)
        for rnd in range(2):
            for f in range(4):
                a(f"ds_write_b128 {v(vT0)}, {v(src+16*rnd+4*f,4)} offset:{f*1024}")
            a("s_waitcnt lgkmcnt(0)")
            a("s_barrier")
            if rnd == 0:
                a(f"ds_read_b32 {v(mo)}, {v(vR1)} offset:4096")
                a(f"ds_read_b32 {v(lo_)}, {v(vR1)} offset:4352")
            for f in range(4):
                a(f"ds_read_b128 {v(R+16*rnd+4*f,4)}, {v(vR0)} offset:{f*1024}")
            a("s_waitcnt lgkmcnt(0)")
            a("s_barrier")
        mt, ao, ap = 66, 67, 68
        a(f"v_min_f32 {v(mt)}, {v(NEGM)}, {v(mo)}")
        a(f"v_sub_f32 {v(ao)}, {v(mt)}, {v(NEGM)}")
        a(f"v_sub_f32 {v(ap)}, {v(mt)}, {v(mo)}")
        a(f"v_exp_f32 {v(ao)}, {v(ao)}")
        a(f"v_exp_f32 {v(ap)}, {v(ap)}")
        a(f"v_mul_f32 {v(lf)}, {v(lf)}, {v(ao)}")
        a(f"v_fmac_f32 {v(lf)}, {v(lo_)}, {v(ap)}")
        a(f"v_rcp_f32 {v(lf)}, {v(lf)}")
        a(f"v_mul_f32 {v(ao)}, {v(ao)}, {v(lf)}")
        a(f"v_mul_f32 {v(ap)}, {v(ap)}, {v(lf)}")
        a("s_lshl_b32 s46, s38, 2")
        a("s_add_u32 s46, s46, s5")
        a("s_lshl_b32 s46, s46, 18")
        a("s_lshl_b32 s47, s6, 13")
        a("s_add_u32 s46, s46, s47")
        a("s_lshl_b32 s47, s4, 12")
        a("s_add_u32 s46, s46, s47")
        for i in range(32):
            a(f"v_mul_f32 {v(own+i)}, {v(own+i)}, {v(ao)}")
            a(f"v_fmac_f32 {v(own+i)}, {v(R+i)}, {v(ap)}")
        for f in range(4):
            d = 100 + 4*f
            for j in range(4):
                a(f"v_cvt_pk_bf16_f32 {v(d+j)}, {v(own+8*f+2*j)}, {v(own+8*f+2*j+1)}")
            a(f"buffer_store_dwordx4 {v(d,4)}, {v(vL16)}, s[24:27], s46 offen offset:{f*1024}")
        a.vm = []
        if variant == 0: a("s_branch K2_FIN")
    a.label("K2_FIN")
    stamp(4)
    a("s_add_u32 s39, s39, 1")
    a("s_cmp_eq_u32 s39, 2")
    a("s_cbranch_scc1 K2_END")
    for i in range(32): a(f"v_mov_b32 {v(QA+i)}, {v(QB+i)}")
    a("s_mov_b32 s38, s7")
    a("s_waitcnt vmcnt(4)")
    a("s_branch K2_BLOCK")
    a.label("K2_END")
    a("s_endpgm")
    for (lab, ret, par, snap_, had_qk, first) in slowsites:
        a.label(lab); a.restore(snap_)
        S = S_[par]; T = TMP; lo, ln = vL[1-par], vL[par]
        x = vT0; y = vZ
        a(f"v_max3_f32 {v(x)}, {v(S)}, {v(S+1)}, {v(S+2)}")
        for r in range(3, 15, 2):
            a(f"v_max3_f32 {v(x)}, {v(x)}, {v(S+r)}, {v(S+r+1)}")
        if first:
            a(f"v_mov_b32 {v(y)}, {f32hex(-1e30)}")
            a(f"v_max3_f32 {v(x)}, {v(x)}, {v(S+15)}, {v(y)}")
        else:
            a(f"v_max3_f32 {v(x)}, {v(x)}, {v(S+15)}, 0")
        a(f"v_mov_b32 {v(y)}, {v(x)}")
        a("s_nop 1")
        a(f"v_permlane32_swap_b32 {v(x)}, {v(y)}")
        a(f"v_max_f32 {v(x)}, {v(x)}, {v(y)}")
        for i in range(16): a(f"v_sub_f32 {v(NEGM+i)}, {v(NEGM+i)}, {v(x)}")
        if first:
            a(f"v_mov_b32 {v(ln)}, 0")
        else:
            a(f"v_sub_f32 {v(y)}, 0, {v(x)}")
            a(f"v_exp_f32 {v(y)}, {v(y)}")
            for i in range(64): a(f"v_mul_f32 {v(O_+i)}, {v(O_+i)}, {v(y)}")
            a(f"v_mul_f32 {v(ln)}, {v(lo)}, {v(y)}")
        if had_qk:
            S2 = S_[1-par]
            for r in range(16): a(f"v_sub_f32 {v(S2+r)}, {v(S2+r)}, {v(x)}")
        for r in range(16): a(f"v_sub_f32 {v(T+r)}, {v(S+r)}, {v(x)}")
        for r in range(16): a(f"v_exp_f32 {v(T+r)}, {v(T+r)}")
        for r in range(16): a(f"v_add_f32 {v(ln)}, {v(ln)}, {v(T+r)}")
        for r in range(8): a(f"v_cvt_pk_bf16_f32 {v(P_[par]+r)}, {v(T+2*r)}, {v(T+2*r+1)}")
        a(f"s_branch {ret}")
```

```python
from gen_common import *
from gen_k1 import emit_ln
import os
FLAGS = os.environ.get('K1FLAGS', '')
def MF16(d, a_, b_, c_):
    return f"v_mfma_f32_16x16x32_bf16 {d}, {a_}, {b_}, {c_}"

def gen_k1c(a):
    name = "k1_kernel"
    kernel_header(a, name)
    a("s_cmp_ge_u32 s2, 256")
    a("s_cbranch_scc1 K1_END")
    a("s_load_dwordx2 s[4:5], s[0:1], 8")
    a("s_load_dwordx4 s[8:11], s[0:1], 24")
    a("s_load_dwordx2 s[6:7], s[0:1], 0")
    a("s_load_dwordx2 s[12:13], s[0:1], 104")
    a("v_lshrrev_b32 v1, 6, v0")
    a("v_and_b32 v0, 63, v0")
    a("v_readfirstlane_b32 s3, v1")
    a("s_and_b32 s36, s2, 7")
    a("s_lshr_b32 s37, s2, 3")
    a("s_and_b32 s37, s37, 3")
    a("s_lshl_b32 s37, s37, 3")
    a("s_add_u32 s36, s36, s37")
    a("s_lshr_b32 s37, s2, 5")
    a("s_lshr_b32 s38, s36, 4")
    a("s_and_b32 s43, s36, 15")
    a("s_lshr_b32 s39, s3, 2")
    a("s_and_b32 s40, s3, 3")
    a("s_waitcnt lgkmcnt(0)")
    srd(a, 16, 4, 2048*512*2)
    a("s_cmp_eq_u32 s38, 0")
    a("s_cselect_b32 s20, s8, s10")
    a("s_cselect_b32 s21, s9, s11")
    a("s_mov_b32 s22, %d" % (512*4096*2))
    a("s_mov_b32 s23, 0x00020000")
    a("s_mov_b32 s44, %d" % WS_KIMG)
    a("s_mov_b32 s45, %d" % WS_VIMG)
    a("s_cselect_b32 s44, s44, s45")
    a("s_add_u32 s24, s12, s44")
    a("s_addc_u32 s25, s13, 0")
    a("s_mov_b32 s26, 0x1000000")
    a("s_mov_b32 s27, 0x00020000")
    srd(a, 28, 6, 2048*640*2)
    srd(a, 32, 12, 64*40*1024, add=WS_XN)
    XS = 32768; NXS = 3; WB0 = 98304; WS_ = 16384; NWS = 4
    vXd, vWd, vSt = 5, [6, 7], 11
    a("v_lshrrev_b32 v2, 3, v0")
    a("s_lshl_b32 s45, s37, 8")
    a("s_lshl_b32 s46, s3, 5")
    a("s_add_u32 s45, s45, s46")
    a("v_add_u32 v2, s45, v2")
    a("v_lshlrev_b32 v2, 10, v2")
    a("v_lshrrev_b32 v4, 4, v0")
    a("v_and_b32 v3, 7, v0")
    a("v_xor_b32 v12, v3, v4")
    a(f"v_lshl_add_u32 {v(vXd)}, v12, 4, v2")
    a("v_xor_b32 v12, 4, v12")
    vXd2 = 8
    a(f"v_lshl_add_u32 {v(vXd2)}, v12, 4, v2")
    a("v_lshrrev_b32 v2, 5, v0")
    a("s_lshr_b32 s45, s3, 1")
    a("s_and_b32 s45, s45, 1")
    a("s_lshl_b32 s45, s45, 2")
    a("s_lshl_b32 s46, s43, 9")
    a("s_lshl_b32 s47, s3, 2")
    for i in range(2):
        a(f"v_add_u32 v3, {2*i}, v2")
        a("v_or_b32 v4, s45, v3")
        a("v_lshlrev_b32 v4, 1, v4")
        a("v_and_b32 v12, 31, v0")
        a("v_xor_b32 v4, v4, v12")
        a("v_add_u32 v3, s47, v3")
        a("v_lshlrev_b32 v3, 13, v3")
        a("v_lshl_add_u32 v3, v4, 4, v3")
        a(f"v_add_u32 {v(vWd[i])}, s46, v3")
    a("s_lshl_b32 s41, s3, 12")
    a("s_lshl_b32 s42, s3, 11")
    LN = 40
    a("v_lshrrev_b32 v2, 4, v0")
    a("v_and_b32 v3, 15, v0")
    a("s_lshl_b32 s45, s2, 3")
    a("s_lshl_b32 s46, s3, 2")
    a("s_add_u32 s45, s45, s46")
    a("v_add_u32 v37, s45, v2")
    a("s_movk_i32 s46, 1280")
    a("v_mul_lo_u32 v38, v37, s46")
    a("v_lshlrev_b32 v4, 4, v3")
    a("v_add_u32 v38, v38, v4")
    a("v_and_b32 v12, 15, v0")
    a("v_lshrrev_b32 v13, 4, v0")
    a("v_lshrrev_b32 v14, 2, v12")
    a("v_and_b32 v15, 3, v12")
    a("v_and_b32 v16, 1, v14")
    a("v_lshlrev_b32 v16, 1, v16")
    a("v_lshrrev_b32 v17, 1, v14")
    a("v_or_b32 v16, v16, v17")
    a("v_lshl_add_u32 v17, v16, 2, v15")
    a("v_lshl_add_u32 v18, v14, 3, v15")
    a("s_lshl_b32 s45, s39, 14")
    vXa = [9, 10]
    vXb = [23, 24]
    vWa = [25, 26, 27, 28]
    def xaddr(dst, rowreg, extra):
        a(f"v_add_u32 v19, {extra}, {v(rowreg)}")
        a("v_lshrrev_b32 v20, 1, v19")
        a("v_and_b32 v20, 7, v20")
        a("v_xor_b32 v20, v20, v13")
        a("v_lshlrev_b32 v19, 7, v19")
        a("v_lshl_add_u32 v19, v20, 4, v19")
        a(f"v_add_u32 {v(dst)}, s45, v19")
    def waddr(dst, colbytes_reg):
        a("v_and_b32 v19, 1, v13")
        a("v_lshl_add_u32 v19, v19, 2, v14")
        a("v_lshlrev_b32 v19, 5, v19")
        a(f"v_xor_b32 v19, v19, {v(colbytes_reg)}")
        a("v_lshl_add_u32 v20, v13, 3, v14")
        a("v_lshl_add_u32 v19, v20, 9, v19")
        a(f"v_add_u32 {v(dst)}, {WB0}, v19")
    a("s_lshl_b32 s46, s40, 7")
    a("s_cmp_eq_u32 s38, 0")
    a("s_cbranch_scc0 K1_ADDRV")
    xaddr(vXa[0], 17, 0)
    a(f"v_mov_b32 {v(vXa[1])}, {v(vXa[0])}")
    for u in range(2):
        a(f"v_lshlrev_b32 v21, 4, v15")
        a(f"v_add_u32 v21, {8*u}, v21")
        a("v_add_u32 v21, s46, v21")
        waddr(vWa[u], 21)
    a("s_branch K1_ADDRD")
    a.label("K1_ADDRV")
    xaddr(vXa[0], 18, 0)
    xaddr(vXa[1], 18, 4)
    a("v_and_b32 v21, 1, v15")
    a("v_lshlrev_b32 v21, 1, v21")
    a("v_lshrrev_b32 v22, 1, v15")
    a("v_or_b32 v21, v21, v22")
    a("v_lshlrev_b32 v21, 3, v21")
    a("v_add_u32 v21, s46, v21")
    waddr(vWa[0], 21)
    a("v_add_u32 v21, 32, v21")
    waddr(vWa[1], 21)
    a.label("K1_ADDRD")
    a(f"v_xor_b32 {v(vWa[2])}, 64, {v(vWa[0])}")
    a(f"v_xor_b32 {v(vWa[3])}, 64, {v(vWa[1])}")
    a(f"v_xor_b32 {v(vXb[0])}, 64, {v(vXa[0])}")
    a(f"v_xor_b32 {v(vXb[1])}, 64, {v(vXa[1])}")
    vXh = [29, 30, 31, 32]
    for k, r in enumerate(vXa + vXb): a(f"v_add_u32 {v(vXh[k])}, {2*XS}, {v(r)}")
    a("v_lshrrev_b32 v19, 1, v13")
    a("v_lshlrev_b32 v19, 10, v19")
    a("v_and_b32 v20, 1, v13")
    a("v_lshl_add_u32 v19, v20, 9, v19")
    a(f"v_lshl_add_u32 {v(vSt)}, v12, 4, v19")
    order = []
    def xdma(S):
        out = []
        for i in range(4):
            out += [f"s_add_u32 m0, s41, {(S % NXS)*XS + i*1024}",
                    f"s_mov_b32 s47, {S*128 + i*8192}",
                    f"buffer_load_dwordx4 {v(vXd if i % 2 == 0 else vXd2)}, s[16:19], s47 offen lds"]
        return out
    def wdma(i):
        out = []
        for j in range(2):
            out += [f"s_add_u32 m0, s42, {WB0 + (i % NWS)*WS_ + j*1024}",
                    f"s_mov_b32 s47, {i*32*8192}",
                    f"buffer_load_dwordx4 {v(vWd[j])}, s[20:23], s47 offen lds"]
        return out
    for t in xdma(0): a(t)
    order += ['x0']*4
    for i in range(2):
        for t in wdma(i): a(t)
        order += [f'w{i}']*2
    for t in xdma(1): a(t)
    order += ['x1']*4
    for t in wdma(2): a(t)
    order += ['w2']*2
    a("s_cmp_ge_u32 s3, 2")
    a("s_cbranch_scc1 K1_NOLN")
    for c in range(5):
        a(f"buffer_load_dwordx4 {v(LN+4*c,4)}, v38, s[28:31], 0 offen offset:{256*c}")
    a.label("K1_NOLN")
    a.vm = []
    ACC = 128
    for i in range(128): a(f"v_mov_b32 {v(128+i)}, 0")
    XF = 64; WF = [96, 112]
    def rdW(i):
        fs = i % 2; so = (i % NWS)*WS_
        return [f"ds_read_b64_tr_b16 {v(WF[fs]+4*ct+2*u,2)}, {v(vWa[(ct % 2) + 2*(ct//2)])} offset:{so + 4*u*512}" for ct in range(4) for u in range(2)]
    def rdX(i, kt, vtype):
        S, hf = divmod(i, 2); sl = S % NXS
        regs = (vXh if sl == 2 else (vXa + vXb)); so = 0 if sl == 2 else sl*XS
        if vtype == 0: reg = regs[0 + 2*hf]; off = kt*2048
        else: reg = regs[(kt % 2) + 2*hf]; off = (kt//2)*4096
        return f"ds_read_b128 {v(XF+4*kt,4)}, {v(reg)} offset:{so + off}"
    def wait_for(*tags):
        idx = max(k for k, t in enumerate(order) if t in tags)
        a(f"s_waitcnt vmcnt({min(63, len(order) - 1 - idx)})")
    NS = 16
    wait_for('x0', 'w0')
    a("s_barrier")
    a("s_cmp_eq_u32 s38, 0")
    a("s_cbranch_scc0 K1_VTYPE")
    snap = a.snapshot(); order0 = list(order)
    for vtype in range(2):
        if vtype == 1:
            a.label("K1_VTYPE"); a.restore(snap); order[:] = order0
        for t in rdW(0): a(t)
        for kt in range(8): a(rdX(0, kt, vtype))
        for i in range(NS):
            if i + 1 < NS:
                wait_for(f'w{i+1}', f'x{(i+1)//2}')
                a("s_barrier")
            fill = []
            if i + 3 < NS:
                fill += wdma(i+3); order += [f'w{i+3}']*2
            if i % 2 == 0 and i//2 + 2 < NS//2:
                fill += xdma(i//2 + 2); order += [f'x{i//2+2}']*4
            nW = rdW(i+1) if i + 1 < NS else []
            fs = i % 2
            a.vm = []
            fi = 0
            per = (len(fill) + len(nW) + 7)//8
            allf = nW + fill
            for kt in range(8):
                for ct in range(4):
                    acc = v(ACC + (kt*4+ct)*4, 4)
                    w = v(WF[fs]+4*ct, 4); x = v(XF+4*kt, 4)
                    a(MF16(acc, w, x, acc) if vtype == 0 else MF16(acc, x, w, acc))
                if i + 1 < NS: a(rdX(i+1, kt, vtype))
                for t in allf[fi:fi+per]: a(t)
                fi += per
            a.vm = []
        a("s_lshl_b32 s45, s43, 1"); a("s_lshr_b32 s46, s40, 1"); a("s_add_u32 s45, s45, s46"); a("s_lshl_b32 s45, s45, 19")
        a("s_lshl_b32 s46, s37, 3"); a("s_lshl_b32 s48, s39, 2"); a("s_add_u32 s46, s46, s48"); a("s_lshl_b32 s46, s46, 13")
        a("s_add_u32 s45, s45, s46"); a("s_and_b32 s46, s40, 1"); a("s_lshl_b32 s46, s46, 12"); a("s_add_u32 s49, s45, s46")
        cnt = 0
        for x in range(8 if vtype == 0 else 4):
            for y in range(2 if vtype == 0 else 4):
                d = 64 + 4*(cnt % 8); cnt += 1
                if vtype == 0:
                    kt, pr = x, y
                    r0 = ACC + (kt*4 + 2*pr)*4; r1 = ACC + (kt*4 + 2*pr + 1)*4
                    so = (kt//2)*8192 + pr*2048; imm = (kt % 2)*256
                else:
                    ct, kp = x, y
                    r0 = ACC + ((2*kp)*4 + ct)*4; r1 = ACC + ((2*kp+1)*4 + ct)*4
                    so = kp*8192 + (ct//2)*2048; imm = (ct % 2)*256
                a(f"v_cvt_pk_bf16_f32 {v(d)}, {v(r0)}, {v(r0+1)}"); a(f"v_cvt_pk_bf16_f32 {v(d+1)}, {v(r0+2)}, {v(r0+3)}")
                a(f"v_cvt_pk_bf16_f32 {v(d+2)}, {v(r1)}, {v(r1+1)}"); a(f"v_cvt_pk_bf16_f32 {v(d+3)}, {v(r1+2)}, {v(r1+3)}")
                a(f"s_add_u32 s48, s49, {so}")
                a(f"buffer_store_dwordx4 {v(d,4)}, {v(vSt)}, s[24:27], s48 offen offset:{imm}")
        a.vm = []
        if vtype == 0: a("s_branch K1_LN")
    a.label("K1_LN")
    a("s_cmp_ge_u32 s3, 2")
    a("s_cbranch_scc1 K1_END")
    a("s_waitcnt vmcnt(16)")
    emit_ln(a, data=LN, f32=64, n8=5, srd_out=32, rowreg=37, lane=0, frag_ks_stride=40, tmp=2)
    a.label("K1_END")
    a("s_endpgm")
```

```python
from gen_common import *
import math, os
from gen_wp import emit_relayout_issue, emit_relayout_finish
FLAGS = os.environ.get('K2FLAGS', '') + ',rdefer'

KBASE = 0
VBASE = 49152
SCR = 114688
WRING = 98304

O_ = 192; QA = 160; QB = 128; S_ = [96, 112]; P_ = [80, 88]; POOL = 48; TMP = 32; NEGM = 16
vL16 = 1; vKa = 2; vVa = 3; vL = [6, 7]; vZb = 8; vZ = 9; vDma = 10; vT0 = 11; vT1 = 12; vT2 = 13; vSt = 14; vNeg = 15
vWa = [4, 5, 8, 9]; vWd = 10
LOOK = int(os.environ.get('K2LOOK', '4'))

import re as _re
def MF(d, a_, b_, c_):
    if 'm16' in FLAGS:
        d0 = int(_re.match(r"v\[(\d+):", d).group(1)); c0 = int(_re.match(r"v\[(\d+):", c_).group(1))
        return [f"v_mfma_f32_16x16x32_bf16 v[{d0+4*k}:{d0+4*k+3}], {a_}, {b_}, v[{c0+4*k}:{c0+4*k+3}]" for k in (0, 2)]
    return f"v_mfma_f32_32x32x16_bf16 {d}, {a_}, {b_}, {c_}"

def gen_k2(a):
    STAMP = 'stamp' in FLAGS
    def stamp(i):
        if not STAMP: return
        a("s_memtime s[50:51]")
        a("s_waitcnt lgkmcnt(0)")
        a("v_mov_b32 v11, s50")
        a(f"s_add_u32 s52, s53, {i*4}")
        a("buffer_store_dword v11, off, s[56:59], s52")
        a.vm = []
    name = "k2_kernel"
    kernel_header(a, name)
    a("s_cmp_ge_u32 s2, 256")
    a("s_cbranch_scc1 K2_END")
    a("s_load_dwordx2 s[42:43], s[0:1], 16")
    a("s_load_dwordx2 s[44:45], s[0:1], 104")
    a("s_load_dwordx2 s[80:81], s[0:1], 40")
    a("s_load_dwordx2 s[82:83], s[0:1], 72")
    a("s_load_dwordx2 s[84:85], s[0:1], 56")
    a("v_lshrrev_b32 v1, 6, v0")
    a("v_and_b32 v0, 63, v0")
    a("v_readfirstlane_b32 s3, v1")
    a("s_lshr_b32 s4, s3, 2")
    a("s_and_b32 s5, s3, 3")
    a("s_and_b32 s6, s2, 7")
    a("s_lshl_b32 s6, s6, 2")
    a("s_lshr_b32 s7, s2, 3")
    a("s_and_b32 s46, s7, 3")
    a("s_add_u32 s6, s6, s46")
    a("s_lshr_b32 s7, s2, 5")
    a("s_lshl_b32 s40, s3, 11")
    CSC = math.log2(math.e)/math.sqrt(128.0)
    a(f"s_mov_b32 s36, {f32hex(CSC)}")
    a(f"s_mov_b32 s37, {f32hex(2.0**60)}")
    a("s_waitcnt lgkmcnt(0)")
    srd(a, 8, 44, 64*40*1024, add=WS_XN)
    srd(a, 12, 42, 640*4096*2)
    srd(a, 16, 44, 0x1000000, add=WS_KIMG)
    srd(a, 20, 44, 0x1000000, add=WS_VIMG)
    srd(a, 24, 44, 0x1000000, add=WS_CTX)
    if STAMP:
        a("s_load_dwordx2 s[54:55], s[0:1], 96")
        a("s_waitcnt lgkmcnt(0)")
        srd(a, 56, 54, 256)
        a("s_lshl_b32 s53, s3, 5")
        a("s_cmp_eq_u32 s2, 224")
        a("s_cselect_b32 s53, s53, 4096")
    stamp(0)
    a(f"v_lshlrev_b32 {v(vL16)}, 4, v0")
    a("s_sub_u32 s47, 15, s7")
    a("s_cmp_eq_u32 s4, 0")
    a("s_cselect_b32 s46, s47, s7")
    a("s_lshl_b32 s46, s46, 2")
    a("s_add_u32 s46, s46, s5")
    a("s_mul_i32 s46, s46, 40960")
    a("v_lshrrev_b32 v11, 4, v0")
    a("v_and_b32 v12, 15, v0")
    a("v_lshlrev_b32 v13, 2, v11")
    a("v_xor_b32 v12, v12, v13")
    a("v_lshlrev_b32 v12, 4, v12")
    a("s_lshl_b32 s47, s3, 3")
    a("v_add_u32 v11, s47, v11")
    a("v_lshlrev_b32 v11, 13, v11")
    a("s_lshl_b32 s47, s6, 8")
    a(f"v_add3_u32 {v(vWd)}, v11, v12, s47")
    a("v_and_b32 v11, 15, v0")
    a("v_lshrrev_b32 v12, 2, v11")
    a("v_and_b32 v13, 3, v11")
    a("v_lshrrev_b32 v14, 5, v0")
    a("v_lshlrev_b32 v14, 3, v14")
    a("v_add_u32 v14, v14, v12")
    a("v_lshlrev_b32 v14, 8, v14")
    a("v_lshrrev_b32 v15, 4, v0")
    a("v_and_b32 v15, 1, v15")
    a("v_lshlrev_b32 v15, 1, v15")
    a("v_and_b32 v11, 1, v13")
    a("v_add_u32 v15, v15, v11")
    a("v_lshlrev_b32 v12, 2, v12")
    a("v_xor_b32 v15, v15, v12")
    a("v_lshlrev_b32 v15, 4, v15")
    a("v_lshrrev_b32 v13, 1, v13")
    a("v_lshlrev_b32 v13, 3, v13")
    a(f"v_add3_u32 v14, v14, v15, v13")
    a(f"v_add_u32 {v(vWa[0])}, {WRING}, v14")
    for db in range(1, 4):
        a(f"v_xor_b32 {v(vWa[db])}, {db*64}, {v(vWa[0])}")
    ACC = O_
    XB = 96
    WF = [32, 48]
    NST = 10
    def wdma(st):
        out = []
        for i in range(2):
            out += [f"s_add_u32 m0, s40, {WRING + (st % 4)*16384 + i*1024}",
                    f"s_mov_b32 s47, {st*64*8192 + i*4*8192}",
                    f"buffer_load_dwordx4 {v(vWd)}, s[12:15], s47 offen lds"]
        return out
    def xload(ks):
        return [f"s_add_u32 s47, s46, {ks*1024}",
                f"buffer_load_dwordx4 {v(XB + 4*(ks % 8), 4)}, {v(vL16)}, s[8:11], s47 offen"]
    def wreads(ks, fs):
        st, ss = divmod(ks, 4)
        out = []
        for db in range(4):
            for u in range(2):
                out.append(f"ds_read_b64_tr_b16 {v(WF[fs]+4*db+2*u,2)}, {v(vWa[db])} offset:{(st % 4)*16384 + (16*ss+4*u)*256}")
        return out
    for st in range(3):
        for t in wdma(st): a(t)
    a.vm = []
    for ks in range(7):
        for t in xload(ks): a(t)
    order = ['d0']*2 + ['d1']*2 + ['d2']*2 + [f'x{k}' for k in range(7)]
    a("s_lshl_b32 s61, s2, 3")
    a("s_add_u32 s61, s61, s3")
    a("s_mul_i32 s62, s3, 5120")
    a(f"s_add_u32 s62, s62, {SCR}")
    for i in range(64): a(f"v_mov_b32 {v(ACC+i)}, 0")
    vKVd = 15
    a(f"v_add_u32 {v(vKVd)}, s40, {v(vL16)}")
    a("s_lshl_b32 s48, s6, 19")
    def dmaK(vd, wrap=True):
        o = [["s_add_u32 m0, s32, s40", "s_add_u32 s32, s32, 16384",
                f"buffer_load_dwordx4 {v(vd)}, s[16:19], s34 offen lds"],
                [f"buffer_load_dwordx4 {v(vd)}, s[16:19], s34 offen offset:1024 lds",
                "s_add_u32 s34, s34, 16384"],
                [f"s_cmp_eq_u32 s32, {KBASE+49152}",
                f"s_cselect_b32 s32, {KBASE}, s32"]]
        if wrap: o += [["s_cmp_eq_u32 s34, s63", "s_cselect_b32 s34, s48, s34"]]
        return o
    def dmaV(vd, wrap=True):
        o = [["s_add_u32 m0, s33, s40", "s_add_u32 s33, s33, 16384",
                f"buffer_load_dwordx4 {v(vd)}, s[20:23], s35 offen lds"],
                [f"buffer_load_dwordx4 {v(vd)}, s[20:23], s35 offen offset:1024 lds",
                "s_add_u32 s35, s35, 16384"],
                [f"s_cmp_eq_u32 s33, {VBASE+65536}",
                f"s_cselect_b32 s33, {VBASE}, s33"]]
        if wrap: o += [["s_cmp_eq_u32 s35, s63", "s_cselect_b32 s35, s48, s35"]]
        return o
    a(f"s_mov_b32 s32, {KBASE}")
    a(f"s_mov_b32 s33, {VBASE}")
    a("s_mov_b32 s34, s48")
    a("s_mov_b32 s35, s48")
    def wait_for(tag):
        idx = max(i for i, t in enumerate(order) if t == tag)
        n = len(order) - 1 - idx
        a(f"s_waitcnt vmcnt({n})")
    wait_for('d0')
    a("s_barrier")
    for t in wreads(0, 0): a(t)
    for st in range(NST):
        if st + 1 < NST:
            wait_for(f'd{st+1}')
            a("s_barrier")
        fill0 = []
        if st + 3 < NST:
            fill0 = wdma(st + 3)
        for ss in range(4):
            ks = st*4 + ss
            fs = ks % 2
            mm = [MF(v(ACC+16*db,16), v(WF[fs]+4*db,4), v(XB+4*(ks % 8),4), v(ACC+16*db,16)) for db in range(4)]
            wait_for(f'x{ks}')
            fill = []
            if ss == 0 and fill0:
                fill += fill0; order += [f'd{st+3}']*2
            if st == 7 and ss == 1:
                fill += [x for g_ in (dmaK(vKVd, False) + dmaK(vKVd, False) + dmaV(vKVd, False)) for x in g_]; order += ['kv']*6
            if ks + 1 < NST*4: fill += wreads(ks+1, 1-fs)
            if ks + 7 < NST*4:
                fill += xload(ks+7); order.append(f'x{ks+7}')
            a.vm = []
            interleave(a, mm, fill)
            a.vm = []
    stamp(1)
    a("s_barrier")
    for db in range(4):
        for r in range(16):
            a(f"v_mul_f32 {v(ACC+16*db+r)}, s36, {v(ACC+16*db+r)}")
    for db in range(4):
        for t in range(2):
            for j in range(4):
                r = ACC + 16*db + 8*t + 2*j
                a(f"v_cvt_pk_bf16_f32 {v(QA + 4*(2*db+t) + j)}, {v(r)}, {v(r+1)}")
    a("s_lshl_b32 s46, s3, 13")
    a(f"s_add_u32 s46, s46, {WRING}")
    a(f"v_add_u32 {v(vT0)}, s46, {v(vL16)}")
    for f in range(8):
        a(f"ds_write_b128 {v(vT0)}, {v(QA+4*f,4)} offset:{f*1024}")
    a("s_waitcnt lgkmcnt(0)")
    a("s_barrier")
    a("s_lshl_b32 s46, s5, 13")
    a(f"s_add_u32 s46, s46, {WRING}")
    a(f"v_add_u32 {v(vT0)}, s46, {v(vL16)}")
    for f in range(8):
        a(f"ds_read_b128 {v(QA+4*f,4)}, {v(vT0)} offset:{f*1024}")
        a(f"ds_read_b128 {v(QB+4*f,4)}, {v(vT0)} offset:{32768 + f*1024}")
    a(f"v_mov_b32 {v(vDma)}, {v(vKVd)}")
    a(f"v_lshrrev_b32 {v(vT2)}, 5, v0")
    a(f"v_and_b32 {v(vT1)}, 31, v0")
    a(f"v_lshlrev_b32 {v(vT2)}, 3, {v(vT2)}")
    a(f"v_sub_u32 {v(vT1)}, {v(vT1)}, {v(vT2)}")
    a("s_sub_u32 s46, s5, s4")
    a("s_lshl_b32 s46, s46, 5")
    a(f"v_add_u32 {v(vNeg)}, s46, {v(vT1)}")
    a("s_lshl_b32 s41, s4, 13")
    a(f"v_add_u32 {v(vSt)}, s41, {v(vL16)}")
    a("s_add_u32 s86, s4, 2")
    a("s_cmp_lt_u32 s5, s86")
    a("s_cselect_b32 s86, 1, 0")
    a("s_mov_b32 s39, 0")
    a("s_sub_u32 s38, 15, s7")
    a(f"s_mov_b32 s30, {KBASE}")
    a(f"s_mov_b32 s31, {VBASE}")
    a(f"v_mov_b32 {v(vT2)}, 0xff800000")
    a(f"v_mov_b32 {v(vT1)}, s37")
    a("s_waitcnt vmcnt(0) lgkmcnt(0)")
    a("s_barrier")
    a.vm = []
    if 'rearly' in FLAGS: emit_relayout_issue(a, 61, 62, 32, 64)
    a.vm = []
    if 'prio' in FLAGS:
        a("s_cmp_eq_u32 s4, 0")
        a("s_cbranch_scc1 K2_NOPRIO")
        a("s_setprio 1")
        a.label("K2_NOPRIO")
    stamp(2)
    a.label("K2_BLOCK")
    a("s_lshl_b32 s28, s38, 1")
    a("s_add_u32 s28, s28, 2")
    a("s_lshl_b32 s63, s28, 14")
    a("s_add_u32 s63, s63, s48")
    a("s_lshl_b32 s46, s38, 7")
    a(f"v_add_u32 {v(vZb)}, s46, {v(vNeg)}")
    for i in range(64): a(f"v_mov_b32 {v(O_+i)}, 0")
    for i in range(16): a(f"v_mov_b32 {v(NEGM+i)}, 0")
    a(f"v_mov_b32 {v(vL[0])}, 0")
    a(f"v_mov_b32 {v(vL[1])}, 0")
    a("s_mov_b32 s29, 0")
    def adv_k():
        return ["s_add_u32 s30, s30, 16384", f"s_cmp_eq_u32 s30, {KBASE+49152}", f"s_cselect_b32 s30, {KBASE}, s30"]
    def adv_v():
        return ["s_add_u32 s31, s31, 16384", f"s_cmp_eq_u32 s31, {VBASE+65536}", f"s_cselect_b32 s31, {VBASE}, s31"]

    slowsites = []
    def iteration(par, do_pv, do_qk, sm, masked, next_pv, pre, wait=4, dma=True, first=False, force_advk=False, force_advv=False):
        if wait == 'dyn9':
            l9 = a.newlabel("K2_W9"); ld = a.newlabel("K2_WD")
            a("s_cmp_eq_u32 s39, 0")
            a(f"s_cbranch_scc1 {l9}")
            a("s_waitcnt vmcnt(4)")
            a(f"s_branch {ld}")
            a.label(l9)
            a("s_waitcnt vmcnt(9)")
            a.label(ld)
        elif wait is not None: a(f"s_waitcnt vmcnt({wait})")
        a("s_barrier")
        frags = []
        if do_pv:
            for t in range(2):
                for db in range(4):
                    frags.append(('V', db, t))
        if do_qk:
            for s_ in range(8): frags.append(('K', s_))
        nf = len(frags)
        def rd(k, nxt=False):
            f = ('V', k % 4, k // 4) if nxt else frags[k]
            buf = POOL + 4*(k % 8)
            if 'halflds' in FLAGS and (k % 2 == 1): return f"s_nop 0"
            if f[0] == 'V': return f"ds_read_b128 {v(buf,4)}, {v(vVa)} offset:{(f[1]*2+f[2])*1024}"
            return f"ds_read_b128 {v(buf,4)}, {v(vKa)} offset:{f[1]*1024}"
        def mf(k):
            f = frags[k]; buf = v(POOL + 4*(k % 8), 4)
            if f[0] == 'V':
                return MF(v(O_+16*f[1],16), buf, v(P_[1-par]+4*f[2],4), v(O_+16*f[1],16))
            sreg = v(S_[1-par],16)
            return MF(sreg, buf, v(QA+4*f[1],4), v(NEGM,16) if f[1] == 0 else sreg)
        head = []
        if do_qk:
            head.append(f"v_add_u32 {v(vKa)}, s30, {v(vSt)}")
            head += adv_k()
        elif force_advk:
            head += adv_k()
        if force_advv:
            head += adv_v()
        for t in head: a(t)
        if not pre:
            for k in range(min(LOOK, nf)): a(rd(k))
        dm = (dmaK(vDma) + dmaV(vDma)) if dma else []
        val = []
        S = S_[par]; T = TMP; lo, ln = vL[1-par], vL[par]
        if sm:
            if masked:
                val.append(f"v_subrev_u32 {v(vZ)}, s29, {v(vZb)}")
                for r in range(16):
                    base = 16*(r//8) + (r % 8)
                    val.append(f"v_cmp_le_i32 vcc, {base}, {v(vZ)}")
                    val.append(f"v_cndmask_b32 {v(S+r)}, {v(vT2)}, {v(S+r)}, vcc")
            seq = []
            for r in range(16 + 2 if not first else 0):
                if r < 16: seq.append(f"v_exp_f32 {v(T+r)}, {v(S+r)}" if 'noexp' not in FLAGS else f"v_mul_f32 {v(T+r)}, 0.5, {v(S+r)}")
                if 0 <= r-2 < 16:
                    q = r-2
                    seq.append(f"v_add_f32 {v(ln)}, {v(lo if q == 0 else ln)}, {v(T+q)}")
                    if q % 2 == 1: seq.append(f"v_cvt_pk_bf16_f32 {v(P_[par]+q//2)}, {v(T+q-1)}, {v(T+q)}")
            val += seq
        fillers = [[] for _ in range(max(nf, 1))]
        for k in range(nf):
            kk = k + LOOK
            if kk < nf:
                fillers[k].append(rd(kk))
            elif next_pv:
                if kk == nf:
                    fillers[k].append(f"v_add_u32 {v(vVa)}, s31, {v(vSt)}")
                    fillers[k] += adv_v()
                fillers[k].append(rd(kk - nf, nxt=True))
        for i, t in enumerate(dm): fillers[min(i, nf-1)] += t
        nv = len(val)
        di = 0
        for k in range(nf):
            want = (nv * (k+1)) // nf
            fillers[k] += val[di:want]; di = want
        for k in range(nf):
            a(mf(k))
            for t in fillers[k]: a(t)
        a.vm = []
        if sm:
            a("s_add_u32 s29, s29, 64")
            lab = a.newlabel("K2_SLOW"); ret = a.newlabel("K2_RET")
            if first:
                a(f"s_branch {lab}")
            else:
                a(f"v_cmp_nle_f32 vcc, {v(ln)}, {v(vT1)}")
                a(f"s_cbranch_vccnz {lab}")
            a.label(ret)
            slowsites.append((lab, ret, par, a.snapshot(), do_qk, first))

    iteration(1, False, True, False, False, False, False, wait=None)
    iteration(0, False, True, True, True, True, False, wait=None, first=True)
    a("s_waitcnt vmcnt(4)")
    a("s_cmp_eq_u32 s28, 2")
    if 'noskip' not in FLAGS:
        a("s_cbranch_scc0 K2_NOT2")
        a("s_cmp_lg_u32 s86, 0")
        a("s_cbranch_scc1 K2_ES")
        a("s_branch K2_E")
        a.label("K2_NOT2")
    else:
        a("s_cbranch_scc1 K2_E")
    a("s_sub_u32 s49, s28, 4")
    a("s_lshr_b32 s49, s49, 1")
    snap = a.snapshot()
    a("s_cmp_eq_u32 s49, 0")
    a("s_cbranch_scc1 K2_C3")
    a.label("K2_LOOP")
    iteration(1, True, True, True, False, True, True)
    iteration(0, True, True, True, False, True, True)
    a("s_sub_u32 s49, s49, 1")
    a("s_cmp_lg_u32 s49, 0")
    a("s_cbranch_scc1 K2_LOOP")
    assert a.snapshot() == snap, (a.snapshot(), snap)
    a.label("K2_C3")
    iteration(1, True, True, True, False, True, True)
    RL = 'norl' not in FLAGS and 'rearly' not in FLAGS
    if RL:
        a.vm = []
        emit_relayout_issue(a, 61, 62, 32, 64)
        a.vm = []
    W9 = 9 if RL else 4
    SKIP = 'noskip' not in FLAGS
    if SKIP:
        a("s_cmp_lg_u32 s86, 0")
        a("s_cbranch_scc1 K2_DS")
    iteration(0, True, True, True, True, True, True, wait=W9)
    assert a.snapshot() == snap
    a.label("K2_E")
    iteration(1, True, False, True, True, True, True, dma=False, wait=W9)
    iteration(0, True, False, False, False, False, True, wait=None, dma=False)
    if SKIP:
        endsnap = a.snapshot()
        a("s_branch K2_JOIN")
        a.label("K2_DS"); a.restore(snap)
        iteration(0, True, False, True, True, True, True, wait=W9, force_advk=True)
        assert a.snapshot() == snap
        a.label("K2_ES")
        iteration(1, True, False, False, False, False, True, wait=W9, dma=False, force_advv=True)
        a(f"v_mov_b32 {v(vL[1])}, {v(vL[0])}")
        a("s_barrier")
        a.label("K2_JOIN")
        a.lgkm = []
    a("s_waitcnt vmcnt(0) lgkmcnt(0)")
    a("s_cmp_lg_u32 s39, 0" if 'norl' not in FLAGS else "s_cmp_lg_u32 s39, 7")
    a("s_cbranch_scc1 K2_NORL")
    a.vm = []
    emit_relayout_finish(a, 62, 100, 104, 64)
    a("s_waitcnt lgkmcnt(0)")
    a.vm = []
    a.label("K2_NORL")
    a("s_barrier")
    if STAMP:
        a("s_lshl_b32 s60, s39, 3")
        a("s_add_u32 s53, s53, s60")
    stamp(3)
    lf = vL[1]
    a(f"v_mov_b32 {v(vT0)}, {v(lf)}")
    a("s_nop 1")
    a(f"v_permlane32_swap_b32 {v(lf)}, {v(vT0)}")
    a(f"v_add_f32 {v(lf)}, {v(lf)}, {v(vT0)}")
    a("s_mul_i32 s46, s3, 4608")
    a(f"s_add_u32 s46, s46, {SCR}")
    a(f"v_add_u32 {v(vT0)}, s46, {v(vL16)}")
    a(f"v_lshrrev_b32 {v(vZ)}, 2, {v(vL16)}")
    a(f"v_add_u32 {v(vZ)}, s46, {v(vZ)}")
    a("s_xor_b32 s46, s3, 4")
    a("s_mul_i32 s46, s46, 4608")
    a(f"s_add_u32 s46, s46, {SCR}")
    vR0, vR1 = 96, 97
    a(f"v_add_u32 {v(vR0)}, s46, {v(vL16)}")
    a(f"v_lshrrev_b32 {v(vR1)}, 2, {v(vL16)}")
    a(f"v_add_u32 {v(vR1)}, s46, {v(vR1)}")
    R = 32
    mo, lo_ = 64, 65
    a(f"ds_write_b32 {v(vZ)}, {v(NEGM)} offset:4096")
    a(f"ds_write_b32 {v(vZ)}, {v(lf)} offset:4352")
    a("s_cmp_eq_u32 s4, 0")
    a("s_cbranch_scc0 K2_MRG1")
    snap2 = a.snapshot()
    for variant in range(2):
        if variant == 1:
            a.label("K2_MRG1"); a.restore(snap2)
        src = O_ + (32 if variant == 0 else 0)
        own = O_ + (0 if variant == 0 else 32)
        for rnd in range(2):
            for f in range(4):
                a(f"ds_write_b128 {v(vT0)}, {v(src+16*rnd+4*f,4)} offset:{f*1024}")
            a("s_waitcnt lgkmcnt(0)")
            a("s_barrier")
            if rnd == 0:
                a(f"ds_read_b32 {v(mo)}, {v(vR1)} offset:4096")
                a(f"ds_read_b32 {v(lo_)}, {v(vR1)} offset:4352")
            for f in range(4):
                a(f"ds_read_b128 {v(R+16*rnd+4*f,4)}, {v(vR0)} offset:{f*1024}")
            a("s_waitcnt lgkmcnt(0)")
            a("s_barrier")
        mt, ao, ap = 66, 67, 68
        a(f"v_min_f32 {v(mt)}, {v(NEGM)}, {v(mo)}")
        a(f"v_sub_f32 {v(ao)}, {v(mt)}, {v(NEGM)}")
        a(f"v_sub_f32 {v(ap)}, {v(mt)}, {v(mo)}")
        a(f"v_exp_f32 {v(ao)}, {v(ao)}")
        a(f"v_exp_f32 {v(ap)}, {v(ap)}")
        a(f"v_mul_f32 {v(lf)}, {v(lf)}, {v(ao)}")
        a(f"v_fmac_f32 {v(lf)}, {v(lo_)}, {v(ap)}")
        a(f"v_rcp_f32 {v(lf)}, {v(lf)}")
        a(f"v_mul_f32 {v(ao)}, {v(ao)}, {v(lf)}")
        a(f"v_mul_f32 {v(ap)}, {v(ap)}, {v(lf)}")
        a("s_lshl_b32 s46, s38, 2")
        a("s_add_u32 s46, s46, s5")
        a("s_lshl_b32 s46, s46, 18")
        a("s_lshl_b32 s47, s6, 13")
        a("s_add_u32 s46, s46, s47")
        a("s_lshl_b32 s47, s4, 12")
        a("s_add_u32 s46, s46, s47")
        for i in range(32):
            a(f"v_mul_f32 {v(own+i)}, {v(own+i)}, {v(ao)}")
            a(f"v_fmac_f32 {v(own+i)}, {v(R+i)}, {v(ap)}")
        for f in range(4):
            d = 100 + 4*f
            for j in range(4):
                a(f"v_cvt_pk_bf16_f32 {v(d+j)}, {v(own+8*f+2*j)}, {v(own+8*f+2*j+1)}")
            a(f"buffer_store_dwordx4 {v(d,4)}, {v(vL16)}, s[24:27], s46 offen offset:{f*1024}")
        a.vm = []
        if variant == 0: a("s_branch K2_FIN")
    a.label("K2_FIN")
    stamp(4)
    a("s_add_u32 s39, s39, 1")
    a("s_cmp_eq_u32 s39, 2")
    a("s_cbranch_scc1 K2_END")
    for i in range(32): a(f"v_mov_b32 {v(QA+i)}, {v(QB+i)}")
    a("s_mov_b32 s38, s7")
    a("s_waitcnt vmcnt(4)")
    a("s_branch K2_BLOCK")
    a.label("K2_END")
    a("s_endpgm")
    for (lab, ret, par, snap_, had_qk, first) in slowsites:
        a.label(lab); a.restore(snap_)
        S = S_[par]; T = TMP; lo, ln = vL[1-par], vL[par]
        x = vT0; y = vZ
        a(f"v_max3_f32 {v(x)}, {v(S)}, {v(S+1)}, {v(S+2)}")
        for r in range(3, 15, 2):
            a(f"v_max3_f32 {v(x)}, {v(x)}, {v(S+r)}, {v(S+r+1)}")
        if first:
            a(f"v_mov_b32 {v(y)}, {f32hex(-1e30)}")
            a(f"v_max3_f32 {v(x)}, {v(x)}, {v(S+15)}, {v(y)}")
        else:
            a(f"v_max3_f32 {v(x)}, {v(x)}, {v(S+15)}, 0")
        a(f"v_mov_b32 {v(y)}, {v(x)}")
        a("s_nop 1")
        a(f"v_permlane32_swap_b32 {v(x)}, {v(y)}")
        a(f"v_max_f32 {v(x)}, {v(x)}, {v(y)}")
        for i in range(16): a(f"v_sub_f32 {v(NEGM+i)}, {v(NEGM+i)}, {v(x)}")
        if first:
            a(f"v_mov_b32 {v(ln)}, 0")
        else:
            a(f"v_sub_f32 {v(y)}, 0, {v(x)}")
            a(f"v_exp_f32 {v(y)}, {v(y)}")
            for i in range(64): a(f"v_mul_f32 {v(O_+i)}, {v(O_+i)}, {v(y)}")
            a(f"v_mul_f32 {v(ln)}, {v(lo)}, {v(y)}")
        if had_qk:
            S2 = S_[1-par]
            for r in range(16): a(f"v_sub_f32 {v(S2+r)}, {v(S2+r)}, {v(x)}")
        for r in range(16): a(f"v_sub_f32 {v(T+r)}, {v(S+r)}, {v(x)}")
        for r in range(16): a(f"v_exp_f32 {v(T+r)}, {v(T+r)}")
        for r in range(16): a(f"v_add_f32 {v(ln)}, {v(ln)}, {v(T+r)}")
        for r in range(8): a(f"v_cvt_pk_bf16_f32 {v(P_[par]+r)}, {v(T+2*r)}, {v(T+2*r+1)}")
        a(f"s_branch {ret}")
```

```python
from gen_common import *
import math, os
from gen_wp import emit_relayout_issue, emit_relayout_finish
FLAGS = os.environ.get('K2FLAGS', '') + ',rdefer'

KBASE = 0
VBASE = 49152
SCR = 114688
WRING = 98304

O_ = 192; QA = 160; QB = 128; S_ = [96, 112]; P_ = [80, 88]; POOL = 48; TMP = 32; NEGM = 16
vL16 = 1; vKa = 2; vVa = 3; vL = [6, 7]; vZb = 8; vZ = 9; vDma = 10; vT0 = 11; vT1 = 12; vT2 = 13; vSt = 14; vNeg = 15
vWa = [4, 5, 8, 9]; vWd = 10
LOOK = int(os.environ.get('K2LOOK', '4'))

import re as _re
def MF(d, a_, b_, c_):
    if 'm16' in FLAGS:
        d0 = int(_re.match(r"v\[(\d+):", d).group(1)); c0 = int(_re.match(r"v\[(\d+):", c_).group(1))
        return [f"v_mfma_f32_16x16x32_bf16 v[{d0+4*k}:{d0+4*k+3}], {a_}, {b_}, v[{c0+4*k}:{c0+4*k+3}]" for k in (0, 2)]
    return f"v_mfma_f32_32x32x16_bf16 {d}, {a_}, {b_}, {c_}"

def gen_k2(a):
    STAMP = 'stamp' in FLAGS
    def stamp(i):
        if not STAMP: return
        a("s_memtime s[50:51]")
        a("s_waitcnt lgkmcnt(0)")
        a("v_mov_b32 v11, s50")
        a(f"s_add_u32 s52, s53, {i*4}")
        a("buffer_store_dword v11, off, s[56:59], s52")
        a.vm = []
    name = "k2_kernel"
    kernel_header(a, name)
    a("s_cmp_ge_u32 s2, 256")
    a("s_cbranch_scc1 K2_END")
    a("s_load_dwordx2 s[42:43], s[0:1], 16")
    a("s_load_dwordx2 s[44:45], s[0:1], 104")
    a("s_load_dwordx2 s[80:81], s[0:1], 40")
    a("s_load_dwordx2 s[82:83], s[0:1], 72")
    a("s_load_dwordx2 s[84:85], s[0:1], 56")
    a("v_lshrrev_b32 v1, 6, v0")
    a("v_and_b32 v0, 63, v0")
    a("v_readfirstlane_b32 s3, v1")
    a("s_lshr_b32 s4, s3, 2")
    a("s_and_b32 s5, s3, 3")
    a("s_and_b32 s6, s2, 7")
    a("s_lshl_b32 s6, s6, 2")
    a("s_lshr_b32 s7, s2, 3")
    a("s_and_b32 s46, s7, 3")
    a("s_add_u32 s6, s6, s46")
    a("s_lshr_b32 s7, s2, 5")
    a("s_lshl_b32 s40, s3, 11")
    CSC = math.log2(math.e)/math.sqrt(128.0)
    a(f"s_mov_b32 s36, {f32hex(CSC)}")
    a(f"s_mov_b32 s37, {f32hex(2.0**60)}")
    a("s_waitcnt lgkmcnt(0)")
    srd(a, 8, 44, 64*40*1024, add=WS_XN)
    srd(a, 12, 42, 640*4096*2)
    srd(a, 16, 44, 0x1000000, add=WS_KIMG)
    srd(a, 20, 44, 0x1000000, add=WS_VIMG)
    srd(a, 24, 44, 0x1000000, add=WS_CTX)
    if STAMP:
        a("s_load_dwordx2 s[54:55], s[0:1], 96")
        a("s_waitcnt lgkmcnt(0)")
        srd(a, 56, 54, 256)
        a("s_lshl_b32 s53, s3, 5")
        a("s_cmp_eq_u32 s2, 224")
        a("s_cselect_b32 s53, s53, 4096")
    stamp(0)
    a(f"v_lshlrev_b32 {v(vL16)}, 4, v0")
    a("s_sub_u32 s47, 15, s7")
    a("s_cmp_eq_u32 s4, 0")
    a("s_cselect_b32 s46, s47, s7")
    a("s_lshl_b32 s46, s46, 2")
    a("s_add_u32 s46, s46, s5")
    a("s_mul_i32 s46, s46, 40960")
    a("v_lshrrev_b32 v11, 4, v0")
    a("v_and_b32 v12, 15, v0")
    a("v_lshlrev_b32 v13, 2, v11")
    a("v_xor_b32 v12, v12, v13")
    a("v_lshlrev_b32 v12, 4, v12")
    a("s_lshl_b32 s47, s3, 3")
    a("v_add_u32 v11, s47, v11")
    a("v_lshlrev_b32 v11, 13, v11")
    a("s_lshl_b32 s47, s6, 8")
    a(f"v_add3_u32 {v(vWd)}, v11, v12, s47")
    a("v_and_b32 v11, 15, v0")
    a("v_lshrrev_b32 v12, 2, v11")
    a("v_and_b32 v13, 3, v11")
    a("v_lshrrev_b32 v14, 5, v0")
    a("v_lshlrev_b32 v14, 3, v14")
    a("v_add_u32 v14, v14, v12")
    a("v_lshlrev_b32 v14, 8, v14")
    a("v_lshrrev_b32 v15, 4, v0")
    a("v_and_b32 v15, 1, v15")
    a("v_lshlrev_b32 v15, 1, v15")
    a("v_and_b32 v11, 1, v13")
    a("v_add_u32 v15, v15, v11")
    a("v_lshlrev_b32 v12, 2, v12")
    a("v_xor_b32 v15, v15, v12")
    a("v_lshlrev_b32 v15, 4, v15")
    a("v_lshrrev_b32 v13, 1, v13")
    a("v_lshlrev_b32 v13, 3, v13")
    a(f"v_add3_u32 v14, v14, v15, v13")
    a(f"v_add_u32 {v(vWa[0])}, {WRING}, v14")
    for db in range(1, 4):
        a(f"v_xor_b32 {v(vWa[db])}, {db*64}, {v(vWa[0])}")
    ACC = O_
    XB = 96
    WF = [32, 48]
    NST = 10
    def wdma(st):
        out = []
        for i in range(2):
            out += [f"s_add_u32 m0, s40, {WRING + (st % 4)*16384 + i*1024}",
                    f"s_mov_b32 s47, {st*64*8192 + i*4*8192}",
                    f"buffer_load_dwordx4 {v(vWd)}, s[12:15], s47 offen lds"]
        return out
    def xload(ks):
        return [f"s_add_u32 s47, s46, {ks*1024}",
                f"buffer_load_dwordx4 {v(XB + 4*(ks % 8), 4)}, {v(vL16)}, s[8:11], s47 offen"]
    def wreads(ks, fs):
        st, ss = divmod(ks, 4)
        out = []
        for db in range(4):
            for u in range(2):
                out.append(f"ds_read_b64_tr_b16 {v(WF[fs]+4*db+2*u,2)}, {v(vWa[db])} offset:{(st % 4)*16384 + (16*ss+4*u)*256}")
        return out
    for st in range(3):
        for t in wdma(st): a(t)
    a.vm = []
    for ks in range(7):
        for t in xload(ks): a(t)
    order = ['d0']*2 + ['d1']*2 + ['d2']*2 + [f'x{k}' for k in range(7)]
    a("s_lshl_b32 s61, s2, 3")
    a("s_add_u32 s61, s61, s3")
    a("s_mul_i32 s62, s3, 5120")
    a(f"s_add_u32 s62, s62, {SCR}")
    for i in range(64): a(f"v_mov_b32 {v(ACC+i)}, 0")
    vKVd = 15
    a(f"v_add_u32 {v(vKVd)}, s40, {v(vL16)}")
    a("s_lshl_b32 s48, s6, 19")
    def dmaK(vd, wrap=True):
        o = [["s_add_u32 m0, s32, s40", "s_add_u32 s32, s32, 16384",
                f"buffer_load_dwordx4 {v(vd)}, s[16:19], s34 offen lds"],
                [f"buffer_load_dwordx4 {v(vd)}, s[16:19], s34 offen offset:1024 lds",
                "s_add_u32 s34, s34, 16384"],
                [f"s_cmp_eq_u32 s32, {KBASE+49152}",
                f"s_cselect_b32 s32, {KBASE}, s32"]]
        if wrap: o += [["s_cmp_eq_u32 s34, s63", "s_cselect_b32 s34, s48, s34"]]
        return o
    def dmaV(vd, wrap=True):
        o = [["s_add_u32 m0, s33, s40", "s_add_u32 s33, s33, 16384",
                f"buffer_load_dwordx4 {v(vd)}, s[20:23], s35 offen lds"],
                [f"buffer_load_dwordx4 {v(vd)}, s[20:23], s35 offen offset:1024 lds",
                "s_add_u32 s35, s35, 16384"],
                [f"s_cmp_eq_u32 s33, {VBASE+65536}",
                f"s_cselect_b32 s33, {VBASE}, s33"]]
        if wrap: o += [["s_cmp_eq_u32 s35, s63", "s_cselect_b32 s35, s48, s35"]]
        return o
    a(f"s_mov_b32 s32, {KBASE}")
    a(f"s_mov_b32 s33, {VBASE}")
    a("s_mov_b32 s34, s48")
    a("s_mov_b32 s35, s48")
    def wait_for(tag):
        idx = max(i for i, t in enumerate(order) if t == tag)
        n = len(order) - 1 - idx
        a(f"s_waitcnt vmcnt({n})")
    wait_for('d0')
    a("s_barrier")
    for t in wreads(0, 0): a(t)
    for st in range(NST):
        if st + 1 < NST:
            wait_for(f'd{st+1}')
            a("s_barrier")
        fill0 = []
        if st + 3 < NST:
            fill0 = wdma(st + 3)
        for ss in range(4):
            ks = st*4 + ss
            fs = ks % 2
            mm = [MF(v(ACC+16*db,16), v(WF[fs]+4*db,4), v(XB+4*(ks % 8),4), v(ACC+16*db,16)) for db in range(4)]
            wait_for(f'x{ks}')
            fill = []
            if ss == 0 and fill0:
                fill += fill0; order += [f'd{st+3}']*2
            if st == 7 and ss == 1:
                fill += [x for g_ in (dmaK(vKVd, False) + dmaK(vKVd, False) + dmaV(vKVd, False)) for x in g_]; order += ['kv']*6
            if ks + 1 < NST*4: fill += wreads(ks+1, 1-fs)
            if ks + 7 < NST*4:
                fill += xload(ks+7); order.append(f'x{ks+7}')
            a.vm = []
            interleave(a, mm, fill)
            a.vm = []
    stamp(1)
    def xbase(dst, wreg):
        a(f"s_lshl_b32 {dst}, {wreg}, 13")
        a(f"s_add_u32 {dst}, {dst}, 32768")
        a(f"s_cmp_ge_u32 {wreg}, 2")
        a(f"s_cselect_b32 s60, 16384, 0")
        a(f"s_add_u32 {dst}, {dst}, s60")
        a(f"s_cmp_ge_u32 {wreg}, 6")
        a(f"s_cselect_b32 s60, 32768, 0")
        a(f"s_add_u32 {dst}, {dst}, s60")
    for db in range(4):
        for r in range(16):
            a(f"v_mul_f32 {v(ACC+16*db+r)}, s36, {v(ACC+16*db+r)}")
    for db in range(4):
        for t in range(2):
            for j in range(4):
                r = ACC + 16*db + 8*t + 2*j
                a(f"v_cvt_pk_bf16_f32 {v(QA + 4*(2*db+t) + j)}, {v(r)}, {v(r+1)}")
    xbase("s46", "s3")
    a(f"v_add_u32 {v(vT0)}, s46, {v(vL16)}")
    for f in range(8):
        a(f"ds_write_b128 {v(vT0)}, {v(QA+4*f,4)} offset:{f*1024}")
    a("s_waitcnt lgkmcnt(0)")
    a("s_barrier")
    xbase("s46", "s5")
    a(f"v_add_u32 {v(vT0)}, s46, {v(vL16)}")
    a("s_add_u32 s47, s5, 4")
    xbase("s46", "s47")
    a(f"v_add_u32 {v(vT1)}, s46, {v(vL16)}")
    for f in range(8):
        a(f"ds_read_b128 {v(QA+4*f,4)}, {v(vT0)} offset:{f*1024}")
        a(f"ds_read_b128 {v(QB+4*f,4)}, {v(vT1)} offset:{f*1024}")
    a(f"v_mov_b32 {v(vDma)}, {v(vKVd)}")
    a(f"v_lshrrev_b32 {v(vT2)}, 5, v0")
    a(f"v_and_b32 {v(vT1)}, 31, v0")
    a(f"v_lshlrev_b32 {v(vT2)}, 3, {v(vT2)}")
    a(f"v_sub_u32 {v(vT1)}, {v(vT1)}, {v(vT2)}")
    a("s_sub_u32 s46, s5, s4")
    a("s_lshl_b32 s46, s46, 5")
    a(f"v_add_u32 {v(vNeg)}, s46, {v(vT1)}")
    a("s_lshl_b32 s41, s4, 13")
    a(f"v_add_u32 {v(vSt)}, s41, {v(vL16)}")
    a("s_add_u32 s86, s4, 2")
    a("s_cmp_lt_u32 s5, s86")
    a("s_cselect_b32 s86, 1, 0")
    a("s_mov_b32 s39, 0")
    a("s_sub_u32 s38, 15, s7")
    a(f"s_mov_b32 s30, {KBASE}")
    a(f"s_mov_b32 s31, {VBASE}")
    a(f"v_mov_b32 {v(vT2)}, 0xff800000")
    a(f"v_mov_b32 {v(vT1)}, s37")
    a("s_waitcnt vmcnt(0) lgkmcnt(0)")
    a("s_barrier")
    a.vm = []
    if 'rearly' in FLAGS: emit_relayout_issue(a, 61, 62, 32, 64)
    a.vm = []
    if 'prio' in FLAGS:
        a("s_cmp_eq_u32 s4, 0")
        a("s_cbranch_scc1 K2_NOPRIO")
        a("s_setprio 1")
        a.label("K2_NOPRIO")
    stamp(2)
    a.label("K2_BLOCK")
    a("s_lshl_b32 s28, s38, 1")
    a("s_add_u32 s28, s28, 2")
    a("s_lshl_b32 s63, s28, 14")
    a("s_add_u32 s63, s63, s48")
    a("s_lshl_b32 s46, s38, 7")
    a(f"v_add_u32 {v(vZb)}, s46, {v(vNeg)}")
    for i in range(64): a(f"v_mov_b32 {v(O_+i)}, 0")
    for i in range(16): a(f"v_mov_b32 {v(NEGM+i)}, 0")
    a(f"v_mov_b32 {v(vL[0])}, 0")
    a(f"v_mov_b32 {v(vL[1])}, 0")
    a("s_mov_b32 s29, 0")
    def adv_k():
        return ["s_add_u32 s30, s30, 16384", f"s_cmp_eq_u32 s30, {KBASE+49152}", f"s_cselect_b32 s30, {KBASE}, s30"]
    def adv_v():
        return ["s_add_u32 s31, s31, 16384", f"s_cmp_eq_u32 s31, {VBASE+65536}", f"s_cselect_b32 s31, {VBASE}, s31"]

    slowsites = []
    def iteration(par, do_pv, do_qk, sm, masked, next_pv, pre, wait=4, dma=True, first=False, force_advk=False, force_advv=False):
        if wait == 'dyn9':
            l9 = a.newlabel("K2_W9"); ld = a.newlabel("K2_WD")
            a("s_cmp_eq_u32 s39, 0")
            a(f"s_cbranch_scc1 {l9}")
            a("s_waitcnt vmcnt(4)")
            a(f"s_branch {ld}")
            a.label(l9)
            a("s_waitcnt vmcnt(9)")
            a.label(ld)
        elif wait is not None: a(f"s_waitcnt vmcnt({wait})")
        a("s_barrier")
        frags = []
        if do_pv:
            for t in range(2):
                for db in range(4):
                    frags.append(('V', db, t))
        if do_qk:
            for s_ in range(8): frags.append(('K', s_))
        nf = len(frags)
        def rd(k, nxt=False):
            f = ('V', k % 4, k // 4) if nxt else frags[k]
            buf = POOL + 4*(k % 8)
            if 'halflds' in FLAGS and ((f[0] == 'V' and f[2] == 1) or (f[0] == 'K' and f[1] % 2 == 1)): return f"s_nop 0"
            if f[0] == 'V': return f"ds_read_b128 {v(buf,4)}, {v(vVa)} offset:{(f[1]*2+f[2])*1024}"
            return f"ds_read_b128 {v(buf,4)}, {v(vKa)} offset:{f[1]*1024}"
        def mf(k):
            f = frags[k]; buf = v(POOL + 4*(k % 8), 4)
            if 'halflds' in FLAGS:
                if f[0] == 'V' and f[2] == 1: buf = v(POOL + 4*((k-4) % 8), 4)
                if f[0] == 'K' and f[1] % 2 == 1: buf = v(POOL + 4*((k-1) % 8), 4)
            if f[0] == 'V':
                return MF(v(O_+16*f[1],16), buf, v(P_[1-par]+4*f[2],4), v(O_+16*f[1],16))
            sreg = v(S_[1-par],16)
            return MF(sreg, buf, v(QA+4*f[1],4), v(NEGM,16) if f[1] == 0 else sreg)
        head = []
        if do_qk:
            head.append(f"v_add_u32 {v(vKa)}, s30, {v(vSt)}")
            head += adv_k()
        elif force_advk:
            head += adv_k()
        if force_advv:
            head += adv_v()
        for t in head: a(t)
        if not pre:
            for k in range(min(LOOK, nf)): a(rd(k))
        dm = (dmaK(vDma) + dmaV(vDma)) if dma else []
        val = []
        S = S_[par]; T = TMP; lo, ln = vL[1-par], vL[par]
        if sm:
            if masked:
                val.append(f"v_subrev_u32 {v(vZ)}, s29, {v(vZb)}")
                for r in range(16):
                    base = 16*(r//8) + (r % 8)
                    val.append(f"v_cmp_le_i32 vcc, {base}, {v(vZ)}")
                    val.append(f"v_cndmask_b32 {v(S+r)}, {v(vT2)}, {v(S+r)}, vcc")
            seq = []
            for r in range(16 + 2 if not first else 0):
                if r < 16: seq.append(f"v_exp_f32 {v(T+r)}, {v(S+r)}" if 'noexp' not in FLAGS else f"v_mul_f32 {v(T+r)}, 0.5, {v(S+r)}")
                if 0 <= r-2 < 16:
                    q = r-2
                    seq.append(f"v_add_f32 {v(ln)}, {v(lo if q == 0 else ln)}, {v(T+q)}")
                    if q % 2 == 1: seq.append(f"v_cvt_pk_bf16_f32 {v(P_[par]+q//2)}, {v(T+q-1)}, {v(T+q)}")
            val += seq
        fillers = [[] for _ in range(max(nf, 1))]
        for k in range(nf):
            kk = k + LOOK
            if kk < nf:
                fillers[k].append(rd(kk))
            elif next_pv:
                if kk == nf:
                    fillers[k].append(f"v_add_u32 {v(vVa)}, s31, {v(vSt)}")
                    fillers[k] += adv_v()
                fillers[k].append(rd(kk - nf, nxt=True))
        for i, t in enumerate(dm): fillers[min(i, nf-1)] += t
        nv = len(val)
        di = 0
        for k in range(nf):
            want = (nv * (k+1)) // nf
            fillers[k] += val[di:want]; di = want
        for k in range(nf):
            a(mf(k))
            for t in fillers[k]: a(t)
        a.vm = []
        if sm:
            a("s_add_u32 s29, s29, 64")
            lab = a.newlabel("K2_SLOW"); ret = a.newlabel("K2_RET")
            if first:
                a(f"s_branch {lab}")
            else:
                a(f"v_cmp_nle_f32 vcc, {v(ln)}, {v(vT1)}")
                a(f"s_cbranch_vccnz {lab}")
            a.label(ret)
            slowsites.append((lab, ret, par, a.snapshot(), do_qk, first))

    iteration(1, False, True, False, False, False, False, wait=None)
    iteration(0, False, True, True, True, True, False, wait=None, first=True)
    a("s_waitcnt vmcnt(4)")
    a("s_cmp_eq_u32 s28, 2")
    if 'noskip' not in FLAGS:
        a("s_cbranch_scc0 K2_NOT2")
        a("s_cmp_lg_u32 s86, 0")
        a("s_cbranch_scc1 K2_ES")
        a("s_branch K2_E")
        a.label("K2_NOT2")
    else:
        a("s_cbranch_scc1 K2_E")
    a("s_sub_u32 s49, s28, 4")
    a("s_lshr_b32 s49, s49, 1")
    snap = a.snapshot()
    a("s_cmp_eq_u32 s49, 0")
    a("s_cbranch_scc1 K2_C3")
    a.label("K2_LOOP")
    iteration(1, True, True, True, False, True, True)
    iteration(0, True, True, True, False, True, True)
    a("s_sub_u32 s49, s49, 1")
    a("s_cmp_lg_u32 s49, 0")
    a("s_cbranch_scc1 K2_LOOP")
    assert a.snapshot() == snap, (a.snapshot(), snap)
    a.label("K2_C3")
    iteration(1, True, True, True, False, True, True)
    RL = 'norl' not in FLAGS and 'rearly' not in FLAGS
    if RL:
        a.vm = []
        emit_relayout_issue(a, 61, 62, 32, 64)
        a.vm = []
    W9 = 9 if RL else 4
    SKIP = 'noskip' not in FLAGS
    if SKIP:
        a("s_cmp_lg_u32 s86, 0")
        a("s_cbranch_scc1 K2_DS")
    iteration(0, True, True, True, True, True, True, wait=W9)
    assert a.snapshot() == snap
    a.label("K2_E")
    iteration(1, True, False, True, True, True, True, dma=False, wait=W9)
    iteration(0, True, False, False, False, False, True, wait=None, dma=False)
    if SKIP:
        endsnap = a.snapshot()
        a("s_branch K2_JOIN")
        a.label("K2_DS"); a.restore(snap)
        iteration(0, True, False, True, True, True, True, wait=W9, force_advk=True)
        assert a.snapshot() == snap
        a.label("K2_ES")
        iteration(1, True, False, False, False, False, True, wait=W9, dma=False, force_advv=True)
        a(f"v_mov_b32 {v(vL[1])}, {v(vL[0])}")
        a("s_barrier")
        a.label("K2_JOIN")
        a.lgkm = []
    a("s_waitcnt vmcnt(0) lgkmcnt(0)")
    a("s_cmp_lg_u32 s39, 0" if 'norl' not in FLAGS else "s_cmp_lg_u32 s39, 7")
    a("s_cbranch_scc1 K2_NORL")
    a.vm = []
    emit_relayout_finish(a, 62, 100, 104, 64)
    a("s_waitcnt lgkmcnt(0)")
    a.vm = []
    a.label("K2_NORL")
    a("s_barrier")
    if STAMP:
        a("s_lshl_b32 s60, s39, 3")
        a("s_add_u32 s53, s53, s60")
    stamp(3)
    lf = vL[1]
    a(f"v_mov_b32 {v(vT0)}, {v(lf)}")
    a("s_nop 1")
    a(f"v_permlane32_swap_b32 {v(lf)}, {v(vT0)}")
    a(f"v_add_f32 {v(lf)}, {v(lf)}, {v(vT0)}")
    a("s_mul_i32 s46, s3, 4608")
    a(f"s_add_u32 s46, s46, {SCR}")
    a(f"v_add_u32 {v(vT0)}, s46, {v(vL16)}")
    a(f"v_lshrrev_b32 {v(vZ)}, 2, {v(vL16)}")
    a(f"v_add_u32 {v(vZ)}, s46, {v(vZ)}")
    a("s_xor_b32 s46, s3, 4")
    a("s_mul_i32 s46, s46, 4608")
    a(f"s_add_u32 s46, s46, {SCR}")
    vR0, vR1 = 96, 97
    a(f"v_add_u32 {v(vR0)}, s46, {v(vL16)}")
    a(f"v_lshrrev_b32 {v(vR1)}, 2, {v(vL16)}")
    a(f"v_add_u32 {v(vR1)}, s46, {v(vR1)}")
    R = 32
    mo, lo_ = 64, 65
    a(f"ds_write_b32 {v(vZ)}, {v(NEGM)} offset:4096")
    a(f"ds_write_b32 {v(vZ)}, {v(lf)} offset:4352")
    a("s_cmp_eq_u32 s4, 0")
    a("s_cbranch_scc0 K2_MRG1")
    snap2 = a.snapshot()
    for variant in range(2):
        if variant == 1:
            a.label("K2_MRG1"); a.restore(snap2)
        src = O_ + (32 if variant == 0 else 0)
        own = O_ + (0 if variant == 0 else 32)
        for rnd in range(2):
            for f in range(4):
                a(f"ds_write_b128 {v(vT0)}, {v(src+16*rnd+4*f,4)} offset:{f*1024}")
            a("s_waitcnt lgkmcnt(0)")
            a("s_barrier")
            if rnd == 0:
                a(f"ds_read_b32 {v(mo)}, {v(vR1)} offset:4096")
                a(f"ds_read_b32 {v(lo_)}, {v(vR1)} offset:4352")
            for f in range(4):
                a(f"ds_read_b128 {v(R+16*rnd+4*f,4)}, {v(vR0)} offset:{f*1024}")
            a("s_waitcnt lgkmcnt(0)")
            a("s_barrier")
        mt, ao, ap = 66, 67, 68
        a(f"v_min_f32 {v(mt)}, {v(NEGM)}, {v(mo)}")
        a(f"v_sub_f32 {v(ao)}, {v(mt)}, {v(NEGM)}")
        a(f"v_sub_f32 {v(ap)}, {v(mt)}, {v(mo)}")
        a(f"v_exp_f32 {v(ao)}, {v(ao)}")
        a(f"v_exp_f32 {v(ap)}, {v(ap)}")
        a(f"v_mul_f32 {v(lf)}, {v(lf)}, {v(ao)}")
        a(f"v_fmac_f32 {v(lf)}, {v(lo_)}, {v(ap)}")
        a(f"v_rcp_f32 {v(lf)}, {v(lf)}")
        a(f"v_mul_f32 {v(ao)}, {v(ao)}, {v(lf)}")
        a(f"v_mul_f32 {v(ap)}, {v(ap)}, {v(lf)}")
        a("s_lshl_b32 s46, s38, 2")
        a("s_add_u32 s46, s46, s5")
        a("s_lshl_b32 s46, s46, 18")
        a("s_lshl_b32 s47, s6, 13")
        a("s_add_u32 s46, s46, s47")
        a("s_lshl_b32 s47, s4, 12")
        a("s_add_u32 s46, s46, s47")
        for i in range(32):
            a(f"v_mul_f32 {v(own+i)}, {v(own+i)}, {v(ao)}")
            a(f"v_fmac_f32 {v(own+i)}, {v(R+i)}, {v(ap)}")
        for f in range(4):
            d = 100 + 4*f
            for j in range(4):
                a(f"v_cvt_pk_bf16_f32 {v(d+j)}, {v(own+8*f+2*j)}, {v(own+8*f+2*j+1)}")
            a(f"buffer_store_dwordx4 {v(d,4)}, {v(vL16)}, s[24:27], s46 offen offset:{f*1024}")
        a.vm = []
        if variant == 0: a("s_branch K2_FIN")
    a.label("K2_FIN")
    stamp(4)
    a("s_add_u32 s39, s39, 1")
    a("s_cmp_eq_u32 s39, 2")
    a("s_cbranch_scc1 K2_END")
    for i in range(32): a(f"v_mov_b32 {v(QA+i)}, {v(QB+i)}")
    a("s_mov_b32 s38, s7")
    a("s_waitcnt vmcnt(4)")
    a("s_branch K2_BLOCK")
    a.label("K2_END")
    a("s_endpgm")
    for (lab, ret, par, snap_, had_qk, first) in slowsites:
        a.label(lab); a.restore(snap_)
        S = S_[par]; T = TMP; lo, ln = vL[1-par], vL[par]
        x = vT0; y = vZ
        a(f"v_max3_f32 {v(x)}, {v(S)}, {v(S+1)}, {v(S+2)}")
        for r in range(3, 15, 2):
            a(f"v_max3_f32 {v(x)}, {v(x)}, {v(S+r)}, {v(S+r+1)}")
        if first:
            a(f"v_mov_b32 {v(y)}, {f32hex(-1e30)}")
            a(f"v_max3_f32 {v(x)}, {v(x)}, {v(S+15)}, {v(y)}")
        else:
            a(f"v_max3_f32 {v(x)}, {v(x)}, {v(S+15)}, 0")
        a(f"v_mov_b32 {v(y)}, {v(x)}")
        a("s_nop 1")
        a(f"v_permlane32_swap_b32 {v(x)}, {v(y)}")
        a(f"v_max_f32 {v(x)}, {v(x)}, {v(y)}")
        for i in range(16): a(f"v_sub_f32 {v(NEGM+i)}, {v(NEGM+i)}, {v(x)}")
        if first:
            a(f"v_mov_b32 {v(ln)}, 0")
        else:
            a(f"v_sub_f32 {v(y)}, 0, {v(x)}")
            a(f"v_exp_f32 {v(y)}, {v(y)}")
            for i in range(64): a(f"v_mul_f32 {v(O_+i)}, {v(O_+i)}, {v(y)}")
            a(f"v_mul_f32 {v(ln)}, {v(lo)}, {v(y)}")
        if had_qk:
            S2 = S_[1-par]
            for r in range(16): a(f"v_sub_f32 {v(S2+r)}, {v(S2+r)}, {v(x)}")
        for r in range(16): a(f"v_sub_f32 {v(T+r)}, {v(S+r)}, {v(x)}")
        for r in range(16): a(f"v_exp_f32 {v(T+r)}, {v(T+r)}")
        for r in range(16): a(f"v_add_f32 {v(ln)}, {v(ln)}, {v(T+r)}")
        for r in range(8): a(f"v_cvt_pk_bf16_f32 {v(P_[par]+r)}, {v(T+2*r)}, {v(T+2*r+1)}")
        a(f"s_branch {ret}")
```

```python
from gen_common import *
from gen_wp import WS_HF, WS_STAT, WS_WF1, MF16
import math, os
WPF = os.environ.get('WPFLAGS', '')

def gen_k5(a, name="k5_kernel"):
    U = name.upper()
    NT = 4; NK = 20; D = 5; WST = 20
    STAMP = 'stamp' in WPF
    def stamp(i):
        if not STAMP: return
        a("s_memtime s[50:51]")
        a("s_waitcnt lgkmcnt(0)")
        a("v_mov_b32 v59, s50")
        a(f"s_add_u32 s52, s53, {i*4}")
        sv = list(a.vm)
        a("buffer_store_dword v59, off, s[56:59], s52")
        a.vm = sv + [set()]
        order.append('stamp')
    kernel_header(a, name)
    a("s_cmp_ge_u32 s2, 224")
    a(f"s_cbranch_scc1 {U}_END")
    a("s_load_dwordx2 s[6:7], s[0:1], 104")
    a("s_load_dwordx2 s[24:25], s[0:1], 64")
    a("v_lshrrev_b32 v1, 6, v0")
    a("v_and_b32 v0, 63, v0")
    a("v_readfirstlane_b32 s3, v1")
    a("s_and_b32 s30, s2, 7")
    a("s_lshl_b32 s30, s30, 2")
    a("s_lshr_b32 s31, s2, 3")
    a("s_and_b32 s33, s31, 3")
    a("s_add_u32 s30, s30, s33")
    a("s_lshr_b32 s31, s2, 5")
    vL16 = 2; vXa = 1
    a(f"v_lshlrev_b32 {v(vL16)}, 4, v0")
    a("v_lshrrev_b32 v3, 5, v0")
    a("v_lshlrev_b32 v3, 11, v3")
    a("v_lshrrev_b32 v4, 4, v0")
    a("v_and_b32 v4, 1, v4")
    a("v_lshl_add_u32 v3, v4, 9, v3")
    a("v_and_b32 v4, 15, v0")
    a(f"v_lshl_add_u32 {v(vXa)}, v4, 4, v3")
    a(f"v_add_u32 v3, 40960, {v(vXa)}")
    a("s_lshl_b32 s37, s31, 4")
    a("s_lshl_b32 s38, s3, 2")
    a("s_add_u32 s37, s37, s38")
    a("s_lshl_b32 s39, s37, 4")
    a(f"s_mul_i32 s37, s37, {WST*1024}")
    a(f"s_mul_i32 s36, s30, {2*40*1024}")
    a("s_lshl_b32 s40, s3, 10")
    a("s_waitcnt lgkmcnt(0)")
    srd(a, 8, 6, 64*40*1024, add=WS_HF)
    srd(a, 12, 6, 112*WST*1024, add=WS_WF1)
    srd(a, 16, 6, 64*108*1024, add=WS_H1)
    srd(a, 20, 24, 1728*2)
    srd(a, 60, 6, 8*2048*8, add=WS_STAT)
    order = []
    if STAMP:
        a("s_load_dwordx2 s[54:55], s[0:1], 96")
        a("s_waitcnt lgkmcnt(0)")
        srd(a, 56, 54, 256)
        a("s_lshl_b32 s53, s3, 5")
        a("s_cmp_eq_u32 s2, 100")
        a("s_cselect_b32 s53, s53, 4096")
    stamp(0)
    ACC = 176; CS = 240
    FB = 64
    XF = 144
    ONE = 60
    ST = 12
    BI = 28
    a("s_lshr_b32 s41, s3, 1")
    a("s_and_b32 s42, s3, 1")
    a(f"s_mul_i32 s42, s42, {40*1024}")
    a("s_lshl_b32 s41, s41, 10")
    a("s_add_u32 s41, s41, s42")
    a("s_add_u32 s41, s41, s36")
    def xdma(j):
        return [f"s_add_u32 m0, s40, {j*4096}",
                f"s_add_u32 s42, s41, {j*2048}",
                f"buffer_load_dwordx4 {v(vL16)}, s[8:11], s42 offen lds"]
    def wloads(s_):
        b = FB + 16*(s_ % D)
        return [[f"s_add_u32 s45, s37, {(nt*WST + s_)*1024}",
                 f"buffer_load_dwordx4 {v(b+4*nt,4)}, {v(vL16)}, s[12:15], s45 offen"] for nt in range(NT)]
    for c in range(4):
        for j in range(5*c, 5*c+5):
            for t in xdma(j): a(t)
        order += [f'xc{c}']*5
        if c < D:
            for g in wloads(c):
                for t in g: a(t)
            order += [f'w{c}']*NT
    for g in wloads(4):
        for t in g: a(t)
    order += ['w4']*NT
    a("s_lshl_b32 s41, s30, 6")
    a("v_add_u32 v5, s41, v0")
    a("v_lshlrev_b32 v5, 3, v5")
    for k in range(8):
        a(f"s_mov_b32 s42, {k*2048*8}")
        a(f"buffer_load_dwordx2 {v(ST+2*k,2)}, v5, s[60:63], s42 offen")
    a("v_lshrrev_b32 v6, 4, v0")
    a("v_lshlrev_b32 v6, 3, v6")
    a("s_lshl_b32 s42, s39, 1")
    for nt in range(NT):
        a(f"buffer_load_dwordx2 {v(BI+2*nt,2)}, v6, s[20:23], s42 offen offset:{nt*32}")
    order += ['st']*12
    a.vm = []
    for i in range(ACC, 256): a(f"v_mov_b32 {v(i)}, 0")
    for i in range(4): a(f"v_mov_b32 {v(ONE+i)}, 0x3f803f80")
    def wait_for(*tags):
        idx = max(i for i, t in enumerate(order) if t in tags)
        a(f"s_waitcnt vmcnt({min(63, len(order) - 1 - idx)})")
    def xreads(s_):
        b = XF + 16*(s_ % 2)
        base, off = (vXa, 0) if s_ < 10 else (3, 40960)
        return [f"ds_read_b128 {v(b+4*qt,4)}, {v(base)} offset:{s_*4096 - off + (qt//2)*1024 + (qt % 2)*256}" for qt in range(4)]
    wait_for('xc0')
    a("s_barrier")
    stamp(1)
    for t in xreads(0): a(t)
    for s_ in range(NK):
        b = FB + 16*(s_ % D); xb = XF + 16*(s_ % 2)
        if (s_ + 1) % 5 == 0 and s_ + 1 < NK:
            wait_for(f'xc{(s_+1)//5}', f'w{s_}')
            a("s_barrier")
        else:
            wait_for(f'w{s_}')
        wl = wloads(s_ + D) if s_ + D < NK else [[]]*NT
        if s_ + D < NK: order += [f'w{s_+D}']*NT
        a.vm = []
        nx = xreads(s_+1) if s_ + 1 < NK else []
        for nt in range(NT):
            for qt in range(4):
                acc = v(ACC + (qt*NT+nt)*4, 4)
                a(MF16(acc, v(b+4*nt,4), v(xb+4*qt,4), acc))
            a(MF16(v(CS+4*nt,4), v(b+4*nt,4), v(ONE,4), v(CS+4*nt,4)))
            if nx: a(nx[nt])
            for t in wl[nt]: a(t)
        a.vm = []
        if s_ == 10:
            wait_for('st')
            for k in range(1, 8):
                a(f"v_add_f32 {v(ST)}, {v(ST)}, {v(ST+2*k)}")
                a(f"v_add_f32 {v(ST+1)}, {v(ST+1)}, {v(ST+2*k+1)}")
            a(f"v_mul_f32 v4, {f32hex(1/640.0)}, {v(ST)}")
            a(f"v_mul_f32 v5, {f32hex(1/640.0)}, {v(ST+1)}")
            a("v_fma_f32 v5, -v4, v4, v5")
            a("v_max_f32 v5, 0, v5")
            a(f"v_add_f32 v5, {f32hex(1e-5)}, v5")
            a("v_rsq_f32 v5, v5")
            a("s_nop 0")
            a("v_mul_f32 v4, v4, v5")
            a("v_sub_f32 v4, 0, v4")
            a("v_and_b32 v6, 15, v0")
            a("v_lshlrev_b32 v6, 2, v6")
            for qt in range(4):
                a(f"v_add_u32 v7, {64*qt}, v6")
                a(f"ds_bpermute_b32 {v(ST+2+2*qt)}, v7, v5")
                a(f"ds_bpermute_b32 {v(ST+3+2*qt)}, v7, v4")
            a("s_waitcnt lgkmcnt(0)")
            if s_ + 1 < NK: pass
    stamp(2)
    c1 = -2.0*math.sqrt(2.0/math.pi)*math.log2(math.e); c2 = c1*0.044715
    a(f"v_mov_b32 v4, {f32hex(c1)}")
    a(f"v_mov_b32 v5, {f32hex(c1)}")
    a(f"v_mov_b32 v6, {f32hex(c2)}")
    a(f"v_mov_b32 v7, {f32hex(c2)}")
    a("v_mov_b32 v8, 1.0")
    a("v_mov_b32 v9, 1.0")
    BF = 36
    for nt in range(NT):
        for j in range(2):
            a(f"v_lshlrev_b32 {v(BF+4*nt+2*j)}, 16, {v(BI+2*nt+j)}")
            a(f"v_and_b32 {v(BF+4*nt+2*j+1)}, 0xffff0000, {v(BI+2*nt+j)}")
    a("v_lshrrev_b32 v10, 4, v0")
    a("v_lshrrev_b32 v11, 1, v10")
    a("v_lshlrev_b32 v11, 9, v11")
    a("v_and_b32 v10, 1, v10")
    a("v_lshl_add_u32 v11, v10, 3, v11")
    a("v_and_b32 v10, 15, v0")
    a("v_lshl_add_u32 v11, v10, 4, v11")
    a(f"s_mul_i32 s41, s30, {2*108*1024}")
    a("s_lshl_b32 s42, s39, 6")
    a("s_add_u32 s41, s41, s42")
    T = 64
    for qt in range(4):
        rs = ST + 2 + 2*qt; mb = ST + 3 + 2*qt
        for nt in range(NT):
            r = ACC + (qt*NT+nt)*4
            t_ = T + 8*((qt*NT+nt) % 4)
            for j in range(4): a(f"v_fma_f32 {v(t_+j)}, {v(mb)}, {v(CS+4*nt+j)}, {v(BF+4*nt+j)}")
            for j in range(4): a(f"v_fma_f32 {v(r+j)}, {v(rs)}, {v(r+j)}, {v(t_+j)}")
            for j in (0, 2): a(f"v_pk_mul_f32 {v(t_+j,2)}, {v(r+j,2)}, {v(r+j,2)}")
            for j in (0, 2): a(f"v_pk_fma_f32 {v(t_+j,2)}, {v(t_+j,2)}, v[6:7], v[4:5]")
            for j in (0, 2): a(f"v_pk_mul_f32 {v(t_+j,2)}, {v(t_+j,2)}, {v(r+j,2)}")
            for j in range(4): a(f"v_exp_f32 {v(t_+j)}, {v(t_+j)}")
            for j in (0, 2): a(f"v_pk_add_f32 {v(t_+j,2)}, {v(t_+j,2)}, v[8:9]")
            for j in range(4): a(f"v_rcp_f32 {v(t_+j)}, {v(t_+j)}")
            for j in (0, 2): a(f"v_pk_mul_f32 {v(t_+j,2)}, {v(t_+j,2)}, {v(r+j,2)}")
            a(f"v_cvt_pk_bf16_f32 {v(t_+4)}, {v(t_)}, {v(t_+1)}")
            a(f"v_cvt_pk_bf16_f32 {v(t_+5)}, {v(t_+2)}, {v(t_+3)}")
            lab = a.newlabel(U + "_SK")
            a(f"s_add_u32 s42, s39, {16*nt}")
            a("s_cmp_ge_u32 s42, 1728")
            a(f"s_cbranch_scc1 {lab}")
            a(f"s_add_u32 s42, s41, {(qt//2)*108*1024 + nt*1024}")
            a(f"buffer_store_dwordx2 {v(t_+4,2)}, v11, s[16:19], s42 offen offset:{(qt % 2)*256}")
            a.label(lab)
    stamp(3)
    a("s_waitcnt vmcnt(0)")
    stamp(4)
    a.label(f"{U}_END")
    a("s_endpgm")
```

```python
from gen_common import *
from gen_wp import WS_HF, WS_STAT, WS_WFO, WS_WF2, WS_WF1, MF16
import math, os
TF = os.environ.get('TFLAGS', '')
SC = " sc1"

vTid = 10

STAMP = 'stamp' in TF
def stamp(a, i):
    if not STAMP: return
    a("s_memtime s[74:75]")
    a("s_waitcnt lgkmcnt(0)")
    a("v_mov_b32 v4, s74")
    a(f"s_add_u32 s76, s77, {i*4}")
    sv = list(a.vm)
    a("buffer_store_dword v4, off, s[80:83], s76")
    a.vm = sv + [set()]

def sync_group(a, cnt_off_s, expect, tag, signal=True):
    a("s_waitcnt vmcnt(0) lgkmcnt(0)")
    a("s_barrier")
    L1 = a.newlabel(f"SY{tag}A"); L2 = a.newlabel(f"SY{tag}B"); L3 = a.newlabel(f"SY{tag}C")
    a("s_cmp_lg_u32 s3, 0")
    a(f"s_cbranch_scc1 {L3}")
    if signal:
        a("v_mov_b32 v4, 1")
        a("s_mov_b64 s[66:67], exec")
        a("s_mov_b64 exec, 1")
        a(f"buffer_atomic_add v4, off, s[52:55], {s(cnt_off_s)} sc1")
        a("s_mov_b64 exec, s[66:67]")
    a("s_mov_b32 s68, 0")
    a.label(L1)
    a(f"buffer_load_dword v4, off, s[52:55], {s(cnt_off_s)} sc1")
    a("s_waitcnt vmcnt(0)")
    a("v_readfirstlane_b32 s69, v4")
    a(f"s_cmp_ge_u32 s69, {expect}")
    a(f"s_cbranch_scc1 {L3}")
    a("s_add_u32 s68, s68, 1")
    a("s_cmp_ge_u32 s68, 2000000")
    a(f"s_cbranch_scc1 {L3}")
    a("s_sleep 2")
    a(f"s_branch {L1}")
    a.label(L3)
    a.vm = []; a.lgkm = []
    a("s_barrier")

def wp_phase(a, mode, prefetched=False, hook_after_main=None):
    cfg = dict(
        oproj=dict(xoff=WS_CTX, nks=256, woff=WS_WFO, wsteps=128, wn16=40, NK=32),
        ffn2=dict(xoff=WS_H1, nks=108, woff=WS_WF2, wsteps=56, wn16=40, NK=14))[mode]
    NT = 5; D = 4
    NK, NKS, WST = cfg['NK'], cfg['nks'], cfg['wsteps']
    xsc = SC if mode == 'ffn2' else ""
    vX = 1; vL16 = 2
    a("v_lshrrev_b32 v2, 5, v0")
    a("v_lshlrev_b32 v2, 10, v2")
    a("v_lshrrev_b32 v3, 4, v0")
    a("v_and_b32 v3, 1, v3")
    a("v_lshl_add_u32 v2, v3, 9, v2")
    a("v_and_b32 v3, 15, v0")
    a(f"v_lshl_add_u32 {v(vX)}, v3, 4, v2")
    a(f"v_lshlrev_b32 {v(vL16)}, 4, v0")
    a(f"s_mul_i32 s36, s30, {2*NKS*1024}")
    a(f"s_mul_i32 s40, s3, {NK*2048}")
    a("s_add_u32 s36, s36, s40")
    a(f"s_add_u32 s35, s36, {NKS*1024}")
    srd(a, 8, 6, 64*NKS*1024, add=cfg['xoff'])
    ACC = 176
    XB = 12
    WB = 76
    if not prefetched:
        wp_wsetup(a, mode)
    def xl(s_):
        b = XB + 16*(s_ % D)
        return [f"s_add_u32 s71, s36, {s_*2048}",
              f"s_add_u32 s72, s35, {s_*2048}",
              f"buffer_load_dwordx4 {v(b,4)}, {v(vX)}, s[8:11], s71 offen{xsc}",
              f"buffer_load_dwordx4 {v(b+4,4)}, {v(vX)}, s[8:11], s71 offen offset:256{xsc}",
              f"buffer_load_dwordx4 {v(b+8,4)}, {v(vX)}, s[8:11], s72 offen{xsc}",
              f"buffer_load_dwordx4 {v(b+12,4)}, {v(vX)}, s[8:11], s72 offen offset:256{xsc}"]
    NL = 4 + NT
    if prefetched:
        for s_ in range(D):
            for t in xl(s_): a(t)
    else:
        for s_ in range(D):
            for g in wp_wl(mode, s_):
                for t in g: a(t)
            for t in xl(s_): a(t)
    for i in range(ACC, 256): a(f"v_mov_b32 {v(i)}, 0")
    a.vm = []
    q = [(4 if prefetched else NL)]*D
    for s_ in range(NK):
        a(f"s_waitcnt vmcnt({min(63, sum(q[s_+1:]))})")
        more = s_ + D < NK
        wl = wp_wl(mode, s_ + D) if more else [[]]*NT
        if more: q.append(NL)
        a.vm = []
        xb = XB + 16*(s_ % D); wb = WB + 20*(s_ % D)
        for nt in range(NT):
            for qt in range(4):
                acc = v(ACC + (qt*NT+nt)*4, 4)
                a(MF16(acc, v(wb+4*nt,4), v(xb+4*qt,4), acc))
            for t in wl[nt]: a(t)
        if more:
            for t in xl(s_ + D): a(t)
        a.vm = []
    stamp(a, 1 if mode == 'oproj' else 7)
    PER = 20; NV = 5; TILE_N = 80
    a(f"v_lshrrev_b32 v4, 2, {v(vTid)}")
    a(f"v_and_b32 v5, 3, {v(vTid)}")
    a("s_lshl_b32 s40, s30, 6")
    a("v_add_u32 v8, s40, v4")
    a(f"s_mul_i32 s41, s31, {TILE_N}")
    a(f"v_mul_u32_u24 v9, {PER}, v5")
    a("v_add_u32 v9, s41, v9")
    F = 12; G = 32; AD = 52; X = 58; B2 = 68
    a("v_lshrrev_b32 v6, 5, v8")
    a("v_mul_u32_u24 v6, 40960, v6")
    a("v_and_b32 v7, 31, v8")
    a("v_lshl_add_u32 v6, v7, 4, v6")
    for i in range(5):
        a(f"v_add_u32 v7, {4*i}, v9")
        a(f"v_lshrrev_b32 {v(AD+i)}, 3, v7")
        a(f"v_lshl_add_u32 {v(AD+i)}, {v(AD+i)}, 9, v6")
        a("v_and_b32 v7, 7, v7")
        a(f"v_lshl_add_u32 {v(AD+i)}, v7, 1, {v(AD+i)}")
    a(f"v_mul_u32_u24 {v(AD+5)}, 1280, v8")
    a(f"v_lshl_add_u32 {v(AD+5)}, v9, 1, {v(AD+5)}")
    srd(a, 16, 6, 64*40*1024, add=WS_HF)
    if mode == 'oproj':
        srd(a, 20, 24, 2048*640*2)
        srd(a, 44, 6, 8*2048*8, add=WS_STAT)
        for i in range(5): a(f"buffer_load_dwordx2 {v(X+2*i,2)}, {v(AD+5)}, s[20:23], 0 offen offset:{8*i}")
    else:
        srd(a, 20, 28, 640*2)
        srd(a, 44, 48, 2048*640*2)
        a("v_lshlrev_b32 v6, 1, v9")
        for i in range(5): a(f"buffer_load_dwordx2 {v(X+2*i,2)}, {v(AD+i)}, s[16:19], 0 offen{SC}")
        for i in range(5): a(f"buffer_load_dwordx2 {v(B2+2*i,2)}, v6, s[20:23], 0 offen offset:{8*i}")
    RP = NT*64 + 16; WSZ = 64*RP
    a("v_and_b32 v6, 15, v0")
    a(f"v_mul_u32_u24 v6, {RP}, v6")
    a("v_lshrrev_b32 v7, 4, v0")
    a("v_lshl_add_u32 v6, v7, 4, v6")
    a(f"s_mul_i32 s40, s3, {WSZ}")
    a("v_add_u32 v6, s40, v6")
    if mode == 'ffn2': a("s_barrier")
    for qt in range(4):
        for nt in range(NT):
            a(f"ds_write_b128 v6, {v(ACC+(qt*NT+nt)*4,4)} offset:{qt*16*RP + nt*64}")
    if hook_after_main: hook_after_main()
    a("s_waitcnt lgkmcnt(0)")
    a("s_barrier")
    a(f"v_mul_u32_u24 v6, {RP}, v4")
    a(f"v_mul_u32_u24 v7, {PER*4}, v5")
    a("v_add_u32 v6, v6, v7")
    for k in range(4):
        off = k*WSZ
        dst = F if k == 0 else G
        base = "v6"
        if off + 16*NV > 65535:
            a(f"v_add_u32 v7, {off}, v6"); base = "v7"; off = 0
        for i in range(NV):
            a(f"ds_read_b128 {v(dst+4*i,4)}, {base} offset:{off + 16*i}")
        if k > 0:
            for i in range(PER): a(f"v_add_f32 {v(F+i)}, {v(F+i)}, {v(G+i)}")
    if mode == 'oproj':
        for i in range(10):
            a(f"v_lshlrev_b32 v6, 16, {v(X+i)}")
            a(f"v_add_f32 {v(F+2*i)}, {v(F+2*i)}, v6")
            a(f"v_and_b32 v7, 0xffff0000, {v(X+i)}")
            a(f"v_add_f32 {v(F+2*i+1)}, {v(F+2*i+1)}, v7")
        for i in range(10): a(f"v_cvt_pk_bf16_f32 {v(G+i)}, {v(F+2*i)}, {v(F+2*i+1)}")
        for i in range(5): a(f"buffer_store_dwordx2 {v(G+2*i,2)}, {v(AD+i)}, s[16:19], 0 offen{SC}")
        for i in range(10):
            a(f"v_lshlrev_b32 {v(F+2*i)}, 16, {v(G+i)}")
            a(f"v_and_b32 {v(F+2*i+1)}, 0xffff0000, {v(G+i)}")
        a(f"v_add_f32 v6, {v(F)}, {v(F+1)}")
        a(f"v_mul_f32 v7, {v(F)}, {v(F)}")
        for i in range(2, 20): a(f"v_add_f32 v6, v6, {v(F+i)}")
        for i in range(1, 20): a(f"v_fmac_f32 v7, {v(F+i)}, {v(F+i)}")
        for perm in ("[1,0,3,2]", "[2,3,0,1]"):
            a(f"v_add_f32_dpp v4, v6, v6 quad_perm:{perm} row_mask:0xf bank_mask:0xf")
            a(f"v_add_f32_dpp v5, v7, v7 quad_perm:{perm} row_mask:0xf bank_mask:0xf")
            a("v_mov_b32 v6, v4")
            a("v_mov_b32 v7, v5")
        a("s_lshl_b32 s40, s31, 11")
        a("v_add_u32 v4, s40, v8")
        a("v_lshlrev_b32 v4, 3, v4")
        a(f"buffer_store_dwordx2 v[6:7], v4, s[44:47], 0 offen{SC}")
    else:
        for src in (X, B2):
            for i in range(10):
                a(f"v_lshlrev_b32 v6, 16, {v(src+i)}")
                a(f"v_add_f32 {v(F+2*i)}, {v(F+2*i)}, v6")
                a(f"v_and_b32 v7, 0xffff0000, {v(src+i)}")
                a(f"v_add_f32 {v(F+2*i+1)}, {v(F+2*i+1)}, v7")
        for i in range(10): a(f"v_cvt_pk_bf16_f32 {v(G+i)}, {v(F+2*i)}, {v(F+2*i+1)}")
        for i in range(5): a(f"buffer_store_dwordx2 {v(G+2*i,2)}, {v(AD+5)}, s[44:47], 0 offen offset:{8*i}")

def wp_wsetup(a, mode):
    woff, WST, NK = (WS_WFO, 128, 32) if mode == 'oproj' else (WS_WF2, 56, 14)
    a(f"v_lshlrev_b32 v2, 4, v0")
    a(f"s_mul_i32 s37, s31, {5*WST*1024}")
    a(f"s_mul_i32 s38, s3, {NK*1024}")
    a("s_add_u32 s37, s37, s38")
    srd(a, 12, 6, 40*WST*1024, add=woff)

def wp_wl(mode, s_):
    WST = 128 if mode == 'oproj' else 56
    b = 76 + 20*(s_ % 4)
    return [[f"s_add_u32 s70, s37, {(nt*WST + s_)*1024}",
             f"buffer_load_dwordx4 {v(b+4*nt,4)}, v2, s[12:15], s70 offen"] for nt in range(5)]

F1_FB = 80; F1_D = 5
def f1_wsetup(a):
    a("v_lshlrev_b32 v2, 4, v0")
    a("s_lshl_b32 s37, s31, 4")
    a("s_lshl_b32 s38, s3, 2")
    a("s_add_u32 s37, s37, s38")
    a("s_lshl_b32 s39, s37, 4")
    a(f"s_mul_i32 s37, s37, {20*1024}")
    srd(a, 12, 6, 112*20*1024, add=WS_WF1)
def f1_wl(s_):
    b = F1_FB + 16*(s_ % F1_D)
    return [[f"s_add_u32 s70, s37, {(nt*20 + s_)*1024}",
             f"buffer_load_dwordx4 {v(b+4*nt,4)}, v2, s[12:15], s70 offen"] for nt in range(4)]

def f1_phase(a, hook_after_main=None):
    NT = 4; NK = 20; D = F1_D
    vL16 = 2; vXa = 1
    a("v_lshrrev_b32 v3, 5, v0")
    a("v_lshlrev_b32 v3, 11, v3")
    a("v_lshrrev_b32 v4, 4, v0")
    a("v_and_b32 v4, 1, v4")
    a("v_lshl_add_u32 v3, v4, 9, v3")
    a("v_and_b32 v4, 15, v0")
    a(f"v_lshl_add_u32 {v(vXa)}, v4, 4, v3")
    a(f"v_add_u32 v3, 40960, {v(vXa)}")
    a(f"s_mul_i32 s36, s30, {2*40*1024}")
    a("s_lshl_b32 s40, s3, 10")
    srd(a, 8, 6, 64*40*1024, add=WS_HF)
    srd(a, 16, 6, 64*108*1024, add=WS_H1)
    srd(a, 20, 26, 1728*2)
    srd(a, 44, 6, 8*2048*8, add=WS_STAT)
    order = []
    ACC = 176; CS = 240
    XF = 160
    XF = 28
    ONE = 60
    ST = 12
    BI = 64
    BF = 12+0
    a("s_lshr_b32 s41, s3, 1")
    a("s_and_b32 s42, s3, 1")
    a(f"s_mul_i32 s42, s42, {40*1024}")
    a("s_lshl_b32 s41, s41, 10")
    a("s_add_u32 s41, s41, s42")
    a("s_add_u32 s41, s41, s36")
    def xdma(j):
        return [f"s_add_u32 m0, s40, {j*4096}",
                f"s_add_u32 s42, s41, {j*2048}",
                f"buffer_load_dwordx4 {v(vL16)}, s[8:11], s42 offen{SC} lds"]
    for c in range(4):
        for j in range(5*c, 5*c+5):
            for t in xdma(j): a(t)
        order += [f'xc{c}']*5
    a("s_lshl_b32 s41, s30, 6")
    a("v_add_u32 v5, s41, v0")
    a("v_lshlrev_b32 v5, 3, v5")
    for k in range(8):
        a(f"s_mov_b32 s42, {k*2048*8}")
        a(f"buffer_load_dwordx2 {v(ST+2*k,2)}, v5, s[44:47], s42 offen{SC}")
    a("v_lshrrev_b32 v6, 4, v0")
    a("v_lshlrev_b32 v6, 3, v6")
    a("s_lshl_b32 s42, s39, 1")
    for nt in range(NT):
        a(f"buffer_load_dwordx2 {v(BI+2*nt,2)}, v6, s[20:23], s42 offen offset:{nt*32}")
    order += ['st']*12
    a.vm = []
    for i in range(ACC, 256): a(f"v_mov_b32 {v(i)}, 0")
    for i in range(4): a(f"v_mov_b32 {v(ONE+i)}, 0x3f803f80")
    def wait_for(*tags):
        c = [i for i, t in enumerate(order) if t in tags]
        if not c: return
        a(f"s_waitcnt vmcnt({min(63, len(order) - 1 - max(c))})")
    def xreads(s_):
        b = XF + 16*(s_ % 2)
        base, off = (vXa, 0) if s_ < 10 else (3, 40960)
        return [f"ds_read_b128 {v(b+4*qt,4)}, {v(base)} offset:{s_*4096 - off + (qt//2)*1024 + (qt % 2)*256}" for qt in range(4)]
    wait_for('xc0')
    a("s_barrier")
    for t in xreads(0): a(t)
    for s_ in range(NK):
        b = F1_FB + 16*(s_ % D); xb = XF + 16*(s_ % 2)
        if (s_ + 1) % 5 == 0 and s_ + 1 < NK:
            wait_for(f'xc{(s_+1)//5}', f'w{s_}')
            a("s_barrier")
        else:
            wait_for(f'w{s_}')
        wl = f1_wl(s_ + D) if s_ + D < NK else [[]]*NT
        if s_ + D < NK: order += [f'w{s_+D}']*NT
        a.vm = []
        nx = xreads(s_+1) if s_ + 1 < NK else []
        for nt in range(NT):
            for qt in range(4):
                acc = v(ACC + (qt*NT+nt)*4, 4)
                a(MF16(acc, v(b+4*nt,4), v(xb+4*qt,4), acc))
            a(MF16(v(CS+4*nt,4), v(b+4*nt,4), v(ONE,4), v(CS+4*nt,4)))
            if nx: a(nx[nt])
            for t in wl[nt]: a(t)
        a.vm = []
        if s_ == 10:
            wait_for('st')
            for k in range(1, 8):
                a(f"v_add_f32 {v(ST)}, {v(ST)}, {v(ST+2*k)}")
                a(f"v_add_f32 {v(ST+1)}, {v(ST+1)}, {v(ST+2*k+1)}")
            a(f"v_mul_f32 v4, {f32hex(1/640.0)}, {v(ST)}")
            a(f"v_mul_f32 v5, {f32hex(1/640.0)}, {v(ST+1)}")
            a("v_fma_f32 v5, -v4, v4, v5")
            a("v_max_f32 v5, 0, v5")
            a(f"v_add_f32 v5, {f32hex(1e-5)}, v5")
            a("v_rsq_f32 v5, v5")
            a("s_nop 0")
            a("v_mul_f32 v4, v4, v5")
            a("v_sub_f32 v4, 0, v4")
            a("v_and_b32 v6, 15, v0")
            a("v_lshlrev_b32 v6, 2, v6")
            for qt in range(4):
                a(f"v_add_u32 v7, {64*qt}, v6")
                a(f"ds_bpermute_b32 {v(ST+2+2*qt)}, v7, v5")
                a(f"ds_bpermute_b32 {v(ST+3+2*qt)}, v7, v4")
            a("s_waitcnt lgkmcnt(0)")
    stamp(a, 4)
    nb_s = 58
    a(f"s_mov_b32 s{nb_s}, s39")
    if hook_after_main: hook_after_main()
    c1 = -2.0*math.sqrt(2.0/math.pi)*math.log2(math.e); c2 = c1*0.044715
    a(f"v_mov_b32 v28, {f32hex(c1)}"); a(f"v_mov_b32 v29, {f32hex(c1)}")
    a(f"v_mov_b32 v30, {f32hex(c2)}"); a(f"v_mov_b32 v31, {f32hex(c2)}")
    a("v_mov_b32 v32, 1.0"); a("v_mov_b32 v33, 1.0")
    BF = 36
    for nt in range(NT):
        for j in range(2):
            a(f"v_lshlrev_b32 {v(BF+4*nt+2*j)}, 16, {v(BI+2*nt+j)}")
            a(f"v_and_b32 {v(BF+4*nt+2*j+1)}, 0xffff0000, {v(BI+2*nt+j)}")
    a("v_lshrrev_b32 v4, 4, v0")
    a("v_lshrrev_b32 v5, 1, v4")
    a("v_lshlrev_b32 v5, 9, v5")
    a("v_and_b32 v4, 1, v4")
    a("v_lshl_add_u32 v5, v4, 3, v5")
    a("v_and_b32 v4, 15, v0")
    a("v_lshl_add_u32 v5, v4, 4, v5")
    a(f"s_mul_i32 s41, s30, {2*108*1024}")
    a(f"s_lshl_b32 s42, s{nb_s}, 6")
    a("s_add_u32 s41, s41, s42")
    T = 52
    for qt in range(4):
        rs = ST + 2 + 2*qt; mb = ST + 3 + 2*qt
        for nt in range(NT):
            r = ACC + (qt*NT+nt)*4
            t_ = T + 8*((qt*NT+nt) % 3)
            for j in range(4): a(f"v_fma_f32 {v(t_+j)}, {v(mb)}, {v(CS+4*nt+j)}, {v(BF+4*nt+j)}")
            for j in range(4): a(f"v_fma_f32 {v(r+j)}, {v(rs)}, {v(r+j)}, {v(t_+j)}")
            for j in (0, 2): a(f"v_pk_mul_f32 {v(t_+j,2)}, {v(r+j,2)}, {v(r+j,2)}")
            for j in (0, 2): a(f"v_pk_fma_f32 {v(t_+j,2)}, {v(t_+j,2)}, v[30:31], v[28:29]")
            for j in (0, 2): a(f"v_pk_mul_f32 {v(t_+j,2)}, {v(t_+j,2)}, {v(r+j,2)}")
            for j in range(4): a(f"v_exp_f32 {v(t_+j)}, {v(t_+j)}")
            for j in (0, 2): a(f"v_pk_add_f32 {v(t_+j,2)}, {v(t_+j,2)}, v[32:33]")
            for j in range(4): a(f"v_rcp_f32 {v(t_+j)}, {v(t_+j)}")
            for j in (0, 2): a(f"v_pk_mul_f32 {v(t_+j,2)}, {v(t_+j,2)}, {v(r+j,2)}")
            a(f"v_cvt_pk_bf16_f32 {v(t_+4)}, {v(t_)}, {v(t_+1)}")
            a(f"v_cvt_pk_bf16_f32 {v(t_+5)}, {v(t_+2)}, {v(t_+3)}")
            lab = a.newlabel("F1_SK")
            a(f"s_add_u32 s42, s{nb_s}, {16*nt}")
            a("s_cmp_ge_u32 s42, 1728")
            a(f"s_cbranch_scc1 {lab}")
            a(f"s_add_u32 s42, s41, {(qt//2)*108*1024 + nt*1024}")
            a(f"buffer_store_dwordx2 {v(t_+4,2)}, v5, s[16:19], s42 offen offset:{(qt % 2)*256}{SC}")
            a.label(lab)

def gen_tail(a, name="kt_kernel"):
    U = name.upper()
    kernel_header(a, name)
    a("s_cmp_ge_u32 s2, 256")
    a(f"s_cbranch_scc1 {U}_END")
    a("s_load_dwordx2 s[6:7], s[0:1], 104")
    a("s_load_dwordx2 s[24:25], s[0:1], 0")
    a("s_load_dwordx2 s[26:27], s[0:1], 64")
    a("s_load_dwordx2 s[28:29], s[0:1], 80")
    a("s_load_dwordx4 s[60:63], s[0:1], 88")
    a("v_lshrrev_b32 v1, 6, v0")
    a(f"v_mov_b32 {v(vTid)}, v0")
    a("v_and_b32 v0, 63, v0")
    a("v_readfirstlane_b32 s3, v1")
    a("s_and_b32 s30, s2, 7")
    a("s_lshl_b32 s30, s30, 2")
    a("s_lshr_b32 s31, s2, 3")
    a("s_and_b32 s33, s31, 3")
    a("s_add_u32 s30, s30, s33")
    a("s_lshr_b32 s31, s2, 5")
    a("s_lshl_b32 s64, s30, 3")
    a("s_add_u32 s65, s64, 4")
    a("s_waitcnt lgkmcnt(0)")
    a("s_mov_b32 s48, s60"); a("s_mov_b32 s49, s61")
    srd(a, 52, 62, 256)
    if STAMP:
        srd(a, 80, 6, 4096, add=0x6F00000)
        a("s_lshl_b32 s77, s3, 6")
        a("s_cmp_eq_u32 s2, 100")
        a("s_cselect_b32 s77, s77, 8192")
    stamp(a, 0)
    def hook1():
        f1_wsetup(a)
        for s_ in range(F1_D):
            for g in f1_wl(s_):
                for t in g: a(t)
    wp_phase(a, 'oproj', hook_after_main=hook1)
    stamp(a, 2)
    sync_group(a, 64, 8, "1")
    stamp(a, 3)
    a("s_cmp_eq_u32 s31, 7")
    a(f"s_cbranch_scc1 {U}_SKIP2")
    def hook2():
        wp_wsetup(a, 'ffn2')
        for s_ in range(4):
            for g in wp_wl('ffn2', s_):
                for t in g: a(t)
    f1_phase(a, hook_after_main=hook2)
    stamp(a, 5)
    sync_group(a, 65, 7, "2")
    stamp(a, 6)
    a(f"s_branch {U}_P3")
    a.label(f"{U}_SKIP2")
    hook2()
    sync_group(a, 65, 7, "3", signal=False)
    a.label(f"{U}_P3")
    wp_phase(a, 'ffn2', prefetched=True)
    stamp(a, 8)
    a("s_waitcnt vmcnt(0)")
    stamp(a, 9)
    a.label(f"{U}_END")
    a("s_endpgm")
```

```python
from gen_common import *
from gen_k1 import emit_ln
import os
FLAGS = os.environ.get('K1FLAGS', '')
def MF16(d, a_, b_, c_):
    return f"v_mfma_f32_16x16x32_bf16 {d}, {a_}, {b_}, {c_}"

def gen_k1d(a):
    name = "k1_kernel"
    kernel_header(a, name)
    a("s_cmp_ge_u32 s2, 256")
    a("s_cbranch_scc1 K1_END")
    a("s_load_dwordx2 s[4:5], s[0:1], 8")
    a("s_load_dwordx4 s[8:11], s[0:1], 24")
    a("s_load_dwordx2 s[6:7], s[0:1], 0")
    a("s_load_dwordx2 s[12:13], s[0:1], 104")
    a("v_lshrrev_b32 v1, 6, v0")
    a("v_and_b32 v0, 63, v0")
    a("v_readfirstlane_b32 s3, v1")
    a("s_and_b32 s36, s2, 7")
    a("s_lshr_b32 s37, s2, 3")
    a("s_and_b32 s37, s37, 3")
    a("s_lshl_b32 s37, s37, 3")
    a("s_add_u32 s36, s36, s37")
    a("s_lshr_b32 s37, s2, 5")
    a("s_lshr_b32 s38, s36, 4")
    a("s_and_b32 s43, s36, 15")
    a("s_lshr_b32 s39, s3, 1")
    a("s_and_b32 s40, s3, 1")
    a("s_waitcnt lgkmcnt(0)")
    srd(a, 16, 4, 2048*512*2)
    a("s_cmp_eq_u32 s38, 0")
    a("s_cselect_b32 s20, s8, s10")
    a("s_cselect_b32 s21, s9, s11")
    a("s_mov_b32 s22, %d" % (512*4096*2))
    a("s_mov_b32 s23, 0x00020000")
    a("s_mov_b32 s44, %d" % WS_KIMG)
    a("s_mov_b32 s45, %d" % WS_VIMG)
    a("s_cselect_b32 s44, s44, s45")
    a("s_add_u32 s24, s12, s44")
    a("s_addc_u32 s25, s13, 0")
    a("s_mov_b32 s26, 0x1000000")
    a("s_mov_b32 s27, 0x00020000")
    srd(a, 28, 6, 2048*640*2)
    srd(a, 32, 12, 64*40*1024, add=WS_XN)
    XS = 32768; NXS = 3; WB0 = 98304; WS_ = 8192; NWS = 6
    vXd, vWd, vSt = 5, [6, 7], 11
    a("v_lshrrev_b32 v2, 3, v0")
    a("s_lshl_b32 s45, s37, 8")
    a("s_lshl_b32 s46, s3, 5")
    a("s_add_u32 s45, s45, s46")
    a("v_add_u32 v2, s45, v2")
    a("v_lshlrev_b32 v2, 10, v2")
    a("v_lshrrev_b32 v4, 4, v0")
    a("v_and_b32 v3, 7, v0")
    a("v_xor_b32 v12, v3, v4")
    a(f"v_lshl_add_u32 {v(vXd)}, v12, 4, v2")
    a("v_xor_b32 v12, 4, v12")
    vXd2 = 8
    a(f"v_lshl_add_u32 {v(vXd2)}, v12, 4, v2")
    a("v_lshrrev_b32 v2, 4, v0")
    a("s_lshr_b32 s45, s3, 1")
    a("s_and_b32 s45, s45, 1")
    a("s_lshl_b32 s45, s45, 2")
    a("v_or_b32 v3, s45, v2")
    a("v_lshlrev_b32 v3, 1, v3")
    a("v_and_b32 v4, 15, v0")
    a("v_xor_b32 v3, v3, v4")
    a("s_lshl_b32 s45, s3, 2")
    a("v_add_u32 v2, s45, v2")
    a("v_lshlrev_b32 v2, 13, v2")
    a("s_lshl_b32 s46, s43, 9")
    a("v_lshl_add_u32 v2, v3, 4, v2")
    a(f"v_add_u32 {v(vWd[0])}, s46, v2")
    a("s_lshl_b32 s41, s3, 12")
    a("s_lshl_b32 s42, s3, 10")
    LN = 40
    a("v_lshrrev_b32 v2, 4, v0")
    a("v_and_b32 v3, 15, v0")
    a("s_lshl_b32 s45, s2, 3")
    a("s_lshl_b32 s46, s3, 2")
    a("s_add_u32 s45, s45, s46")
    a("v_add_u32 v37, s45, v2")
    a("s_movk_i32 s46, 1280")
    a("v_mul_lo_u32 v38, v37, s46")
    a("v_lshlrev_b32 v4, 4, v3")
    a("v_add_u32 v38, v38, v4")
    a("v_and_b32 v12, 15, v0")
    a("v_lshrrev_b32 v13, 4, v0")
    a("v_lshrrev_b32 v14, 2, v12")
    a("v_and_b32 v15, 3, v12")
    a("v_and_b32 v16, 1, v14")
    a("v_lshlrev_b32 v16, 1, v16")
    a("v_lshrrev_b32 v17, 1, v14")
    a("v_or_b32 v16, v16, v17")
    a("v_lshl_add_u32 v17, v16, 2, v15")
    a("v_lshl_add_u32 v18, v14, 3, v15")
    a("s_lshl_b32 s45, s39, 13")
    vXa = [9, 10]
    vXb = [23, 24]
    vWa = [25, 26, 27, 28]
    def xaddr(dst, rowreg, extra):
        a(f"v_add_u32 v19, {extra}, {v(rowreg)}")
        a("v_lshrrev_b32 v20, 1, v19")
        a("v_and_b32 v20, 7, v20")
        a("v_xor_b32 v20, v20, v13")
        a("v_lshlrev_b32 v19, 7, v19")
        a("v_lshl_add_u32 v19, v20, 4, v19")
        a(f"v_add_u32 {v(dst)}, s45, v19")
    def waddr(dst, colbytes_reg):
        a("v_and_b32 v19, 1, v13")
        a("v_lshl_add_u32 v19, v19, 2, v14")
        a("v_lshlrev_b32 v19, 5, v19")
        a(f"v_xor_b32 v19, v19, {v(colbytes_reg)}")
        a("v_lshl_add_u32 v20, v13, 3, v14")
        a("v_lshl_add_u32 v19, v20, 8, v19")
        a(f"v_add_u32 {v(dst)}, {WB0}, v19")
    a("s_lshl_b32 s46, s40, 7")
    a("s_cmp_eq_u32 s38, 0")
    a("s_cbranch_scc0 K1_ADDRV")
    xaddr(vXa[0], 17, 0)
    a(f"v_mov_b32 {v(vXa[1])}, {v(vXa[0])}")
    for u in range(2):
        a(f"v_lshlrev_b32 v21, 4, v15")
        a(f"v_add_u32 v21, {8*u}, v21")
        a("v_add_u32 v21, s46, v21")
        waddr(vWa[u], 21)
    a("s_branch K1_ADDRD")
    a.label("K1_ADDRV")
    xaddr(vXa[0], 18, 0)
    xaddr(vXa[1], 18, 4)
    a("v_and_b32 v21, 1, v15")
    a("v_lshlrev_b32 v21, 1, v21")
    a("v_lshrrev_b32 v22, 1, v15")
    a("v_or_b32 v21, v21, v22")
    a("v_lshlrev_b32 v21, 3, v21")
    a("v_add_u32 v21, s46, v21")
    waddr(vWa[0], 21)
    a("v_add_u32 v21, 32, v21")
    waddr(vWa[1], 21)
    a.label("K1_ADDRD")
    a(f"v_xor_b32 {v(vWa[2])}, 64, {v(vWa[0])}")
    a(f"v_xor_b32 {v(vWa[3])}, 64, {v(vWa[1])}")
    a(f"v_xor_b32 {v(vXb[0])}, 64, {v(vXa[0])}")
    a(f"v_xor_b32 {v(vXb[1])}, 64, {v(vXa[1])}")
    vXh = [29, 30, 31, 32]
    for k, r in enumerate(vXa + vXb): a(f"v_add_u32 {v(vXh[k])}, {2*XS}, {v(r)}")
    a("v_lshrrev_b32 v19, 1, v13")
    a("v_lshlrev_b32 v19, 10, v19")
    a("v_and_b32 v20, 1, v13")
    a("v_lshl_add_u32 v19, v20, 9, v19")
    a(f"v_lshl_add_u32 {v(vSt)}, v12, 4, v19")
    order = []
    def xdma(G):
        S = G % 8
        out = []
        for i in range(4):
            out += [f"s_add_u32 m0, s41, {(G % NXS)*XS + i*1024}",
                    f"s_mov_b32 s47, {S*128 + i*8192}",
                    f"buffer_load_dwordx4 {v(vXd if i % 2 == 0 else vXd2)}, s[16:19], s47 offen lds"]
        return out
    def wdma(i):
        p, it = divmod(i, 16)
        return [f"s_add_u32 m0, s42, {WB0 + (i % NWS)*WS_}",
                f"s_mov_b32 s47, {it*32*8192 + p*256}",
                f"buffer_load_dwordx4 {v(vWd[0])}, s[20:23], s47 offen lds"]
    for t in xdma(0): a(t)
    order += ['x0']*4
    for i in range(2):
        for t in wdma(i): a(t)
        order += [f'w{i}']
    for t in xdma(1): a(t)
    order += ['x1']*4
    for i in range(2, 5):
        for t in wdma(i): a(t)
        order += [f'w{i}']
    a("s_cmp_ge_u32 s3, 2")
    a("s_cbranch_scc1 K1_NOLN")
    for c in range(5):
        a(f"buffer_load_dwordx4 {v(LN+4*c,4)}, v38, s[28:31], 0 offen offset:{256*c}")
    a.label("K1_NOLN")
    a.vm = []
    ACCS = [128, 192]
    for i in range(128): a(f"v_mov_b32 {v(128+i)}, 0")
    XF = 64; WF = [96, 112]
    def rdW(i):
        fs = i % 2; so = (i % NWS)*WS_
        return [f"ds_read_b64_tr_b16 {v(WF[fs]+4*ct+2*u,2)}, {v(vWa[(ct % 2) + 2*(ct//2)])} offset:{so + 4*u*256}" for ct in range(4) for u in range(2)]
    def rdX(i, kt, vtype):
        G, hf = divmod(i, 2); sl = G % NXS
        regs = (vXh if sl == 2 else (vXa + vXb)); so = 0 if sl == 2 else sl*XS
        if vtype == 0: reg = regs[0 + 2*hf]; off = kt*2048
        else: reg = regs[(kt % 2) + 2*hf]; off = (kt//2)*4096
        return f"ds_read_b128 {v(XF+4*kt,4)}, {v(reg)} offset:{so + off}"
    def wait_for(*tags):
        idx = max(k for k, t in enumerate(order) if t in tags)
        a(f"s_waitcnt vmcnt({min(63, len(order) - 1 - idx)})")
    def epi(p, vtype):
        A = ACCS[p]
        groups = [["s_lshl_b32 s45, s43, 1", f"s_add_u32 s45, s45, {p}", "s_lshl_b32 s45, s45, 19",
               "s_lshl_b32 s46, s37, 3", "s_lshl_b32 s48, s39, 1", "s_add_u32 s46, s46, s48", "s_lshl_b32 s46, s46, 13",
               "s_add_u32 s45, s45, s46", "s_lshl_b32 s46, s40, 12", "s_add_u32 s49, s45, s46"]]
        cnt = 0
        for x in range(4):
            for y in range(2):
                d = 12 + 4*(cnt % 2); cnt += 1
                if vtype == 0:
                    kt, pr = x, y
                    r0 = A + (kt*4 + 2*pr)*4; r1 = A + (kt*4 + 2*pr + 1)*4
                    so = (kt//2)*8192 + pr*2048; imm = (kt % 2)*256
                else:
                    ct, kp = x, y
                    r0 = A + ((2*kp)*4 + ct)*4; r1 = A + ((2*kp+1)*4 + ct)*4
                    so = kp*8192 + (ct//2)*2048; imm = (ct % 2)*256
                groups.append([f"v_cvt_pk_bf16_f32 {v(d)}, {v(r0)}, {v(r0+1)}", f"v_cvt_pk_bf16_f32 {v(d+1)}, {v(r0+2)}, {v(r0+3)}",
                     f"v_cvt_pk_bf16_f32 {v(d+2)}, {v(r1)}, {v(r1+1)}", f"v_cvt_pk_bf16_f32 {v(d+3)}, {v(r1+2)}, {v(r1+3)}",
                     f"s_add_u32 s48, s49, {so}",
                     f"buffer_store_dwordx4 {v(d,4)}, {v(vSt)}, s[24:27], s48 offen offset:{imm}"])
        return groups
    NS = 32
    wait_for('x0', 'w0')
    a("s_barrier")
    a("s_cmp_eq_u32 s38, 0")
    a("s_cbranch_scc0 K1_VTYPE")
    snap = a.snapshot(); order0 = list(order)
    for vtype in range(2):
        if vtype == 1:
            a.label("K1_VTYPE"); a.restore(snap); order[:] = order0
        for t in rdW(0): a(t)
        for kt in range(4): a(rdX(0, kt, vtype))
        ep0 = epi(0, vtype)
        for i in range(NS):
            if i + 1 < NS:
                wait_for(f'w{i+1}', f'x{(i+1)//2}')
                a("s_barrier")
            fill = []
            if i + 5 < NS:
                fill += wdma(i+5); order += [f'w{i+5}']
            if i % 2 == 0 and i//2 + 2 < NS//2:
                fill += xdma(i//2 + 2); order += [f'x{i//2+2}']*4
            if 17 <= i < 17 + len(ep0):
                fill += ep0[i - 17]
                if i > 17: order.append('st')
            nW = rdW(i+1) if i + 1 < NS else []
            fs = i % 2; A = ACCS[i//16]
            a.vm = []
            allf = nW + fill
            per = (len(allf) + 3)//4; fi = 0
            for kt in range(4):
                for ct in range(4):
                    acc = v(A + (kt*4+ct)*4, 4)
                    w = v(WF[fs]+4*ct, 4); x = v(XF+4*kt, 4)
                    a(MF16(acc, w, x, acc) if vtype == 0 else MF16(acc, x, w, acc))
                if i + 1 < NS: a(rdX(i+1, kt, vtype))
                for t in allf[fi:fi+per]: a(t)
                fi += per
            a.vm = []
        for g in epi(1, vtype):
            for t in g: a(t)
        a.vm = []
        if vtype == 0: a("s_branch K1_LN")
    a.label("K1_LN")
    a("s_cmp_ge_u32 s3, 2")
    a("s_cbranch_scc1 K1_END")
    a("s_waitcnt vmcnt(8)")
    emit_ln(a, data=LN, f32=64, n8=5, srd_out=32, rowreg=37, lane=0, frag_ks_stride=40, tmp=2)
    a.label("K1_END")
    a("s_endpgm")
```
